```python
import torch

def _softmax(x, axis=-1):
    return torch.softmax(x, dim=axis)
def _gelu(x):
    return torch.nn.functional.gelu(x, approximate="tanh")
def _silu(x):
    return torch.nn.functional.silu(x)
def _sigmoid(x):
    return torch.sigmoid(x)
def _layernorm(x, axis=-1, eps=1e-5):
    m = x.mean(dim=axis, keepdim=True)
    v = x.var(dim=axis, keepdim=True, unbiased=False)
    return (x - m) / torch.sqrt(v + eps)
def _scatter_add(tgt, idx, src, axis=0):
    return tgt.clone().index_add_(axis, idx, src)
def _segment_sum(src, seg, n):
    out = torch.zeros((n,) + src.shape[1:], dtype=src.dtype)
    return out.index_add_(0, seg, src)
def _pad(x, pw):
    flat = tuple(v for pair in reversed(pw) for v in pair)
    return torch.nn.functional.pad(x, flat)

kernel_name = 'concat_heads__spectral_fnet__softmax_full_mha__prompt'

def setup_inputs():

    _w = (lambda a: (lambda t: t.to(torch.bfloat16) if t.is_floating_point() else t)(torch.as_tensor(a)))
    def _A_setup():
        B, S, D = 1, 2048, 576
        ns = torch.arange(S)[:, None] * torch.arange(S)[None, :]
        nd = torch.arange(D)[:, None] * torch.arange(D)[None, :]
        Ws_re = torch.cos(-2.0 * torch.pi * ns / S).to(float)
        Ws_im = torch.sin(-2.0 * torch.pi * ns / S).to(float)
        Wd_re = torch.cos(-2.0 * torch.pi * nd / D).to(float)
        Wd_im = torch.sin(-2.0 * torch.pi * nd / D).to(float)
        return {
            "x": _w((lambda *s: torch.randn(*s, dtype=torch.bfloat16) * 0.05)(B, S, D)),
            "dft_seq_re": _w(Ws_re),
            "dft_seq_im": _w(Ws_im),
            "dft_hid_re": _w(Wd_re),
            "dft_hid_im": _w(Wd_im),
        }
    _A_in = _A_setup()

    def _B_setup():
        B, S, D = 1, 2048, 576
        return {
            "x": _w((lambda *s: torch.randn(*s, dtype=torch.bfloat16) * 0.2)(B, S, D)),
            "wqkv": _w((lambda *s: torch.randn(*s, dtype=torch.bfloat16) * 0.8)(D, 3 * D)),
            "wo": _w((lambda *s: torch.randn(*s, dtype=torch.bfloat16) * 0.2)(D, D)),
        }
    _B_in = _B_setup()

    return {
        "A_x": _A_in["x"],
        "A_dft_seq_re": _A_in["dft_seq_re"],
        "A_dft_seq_im": _A_in["dft_seq_im"],
        "A_dft_hid_re": _A_in["dft_hid_re"],
        "A_dft_hid_im": _A_in["dft_hid_im"],
        "B_x": _B_in["x"],
        "B_wqkv": _B_in["wqkv"],
        "B_wo": _B_in["wo"],
    }

def reference(A_x, A_dft_seq_re, A_dft_seq_im, A_dft_hid_re, A_dft_hid_im, B_x, B_wqkv, B_wo):
    def _A_ref(x, dft_seq_re, dft_seq_im, dft_hid_re, dft_hid_im):
        a = torch.einsum("bsd,ed->bse", x, dft_hid_re)
        b = torch.einsum("bsd,ed->bse", x, dft_hid_im)
        y = torch.einsum("ts,bse->bte", dft_seq_re, a) - torch.einsum("ts,bse->bte", dft_seq_im, b)
        return y

    def _B_ref(x, wqkv, wo):
        B, S, D = x.shape
        H = 32; Dh = D // H
        qkv = (lambda x, *d: x.permute(*d))((x @ wqkv).reshape(B, S, 3, H, Dh), 2, 0, 3, 1, 4)
        q, k, v = qkv[0], qkv[1], qkv[2]
        scale = Dh ** -0.5
        scores = torch.einsum("bhqd,bhkd->bhqk", q, k) * scale
        p = _softmax(scores, axis=-1)
        o = torch.einsum("bhqk,bhkd->bhqd", p, v)
        return (lambda x, *d: x.permute(*d))(o, 0, 2, 1, 3).reshape(B, S, D) @ wo

    a = _A_ref(A_x, A_dft_seq_re, A_dft_seq_im, A_dft_hid_re, A_dft_hid_im)
    b = _B_ref(B_x, B_wqkv, B_wo)
    return torch.concatenate([a, b], axis=-1)
```

```python
import re
TRANS=('v_exp_f32','v_log_f32','v_rcp_f32','v_rsq_f32','v_sqrt_f32','v_sin_f32','v_cos_f32')
def regs(tok):
    tok=tok.strip()
    neg=tok.lstrip('-|').rstrip('|')
    m=re.fullmatch(r'([vsa])(\d+)',neg)
    if m: return {(m.group(1),int(m.group(2)))}
    m=re.fullmatch(r'([vsa])\[(\d+):(\d+)\]',neg)
    if m: return {(m.group(1),i) for i in range(int(m.group(2)),int(m.group(3))+1)}
    if neg=='vcc': return {('s',106),('s',107)}
    if neg=='exec': return {('x',0)}
    if neg=='m0': return {('m',0)}
    return set()
def passes(op):
    if '_2b' in op: return 16
    if '_4b' in op: return 8
    if '32x32x16' in op or '32x32x8' in op: return 8
    if '16x16x32' in op or '16x16x16' in op: return 4
    raise Exception(op)
class I: pass
def parse(line):
    t=line.split(';')[0].strip()
    if not t or t.startswith('.') : return None
    if t.endswith(':'):
        i=I(); i.label=t[:-1]; i.op=None; return i
    i=I(); i.label=None; i.txt=t
    p=t.split(None,1); i.op=p[0]
    rest=p[1] if len(p)>1 else ''
    ops=[x.strip() for x in rest.split(',')] if rest else []
    mods=''
    if ops:
        l=ops[-1].split(None,1)
        ops[-1]=l[0]; mods=l[1] if len(l)>1 else ''
    i.ops=ops; i.mods=mods
    op=i.op
    i.w=set(); i.r=set(); i.kind='other'; i.ws=1
    R=[regs(o) for o in ops]
    if op=='s_nop': i.ws=int(ops[0])+1; i.kind='nop'
    elif op=='v_nop': i.kind='nop'
    elif op.startswith('v_mfma'):
        i.kind='mfma'; i.w=R[0]; i.A=R[1]; i.B=R[2]; i.C=R[3]; i.r=R[1]|R[2]|R[3]; i.p=passes(op)
    elif op.startswith('v_'):
        i.kind='valu'
        if 'permlane' in op and 'swap' in op: i.w=R[0]|R[1]; i.r=R[0]|R[1]
        elif op.startswith('v_cmpx'): i.w={('x',0)}; i.r=set().union(*R)
        elif op.startswith('v_cmp'): i.w=R[0]; i.r=set().union(*R[1:])
        elif '_co_' in op: i.w=R[0]|R[1]; i.r=set().union(*R[2:])
        else:
            i.w=R[0]; i.r=set().union(*R[1:]) if len(R)>1 else set()
            if 'fmac' in op or 'mac_' in op or 'd16' in mods or 'dpp' in op or 'sdwa' in op or 'row_' in mods: i.r|=R[0]
            if op.startswith('v_cndmask') and len(ops)==3: i.r|=regs('vcc')
        i.trans=any(op.startswith(x) for x in TRANS)
        i.dpp=('dpp' in op) or ('row_' in mods) or ('quad_perm' in mods)
    elif op.startswith('ds_'):
        i.kind='ds'
        if 'read' in op or 'bpermute' in op or 'permute' in op: i.w=R[0]; i.r=set().union(*R[1:])
        else: i.r=set().union(*R)
    elif op.startswith('buffer_') or op.startswith('global_'):
        i.kind='vmem'; i.lds=(' lds' in ' '+mods) or ('_lds_' in op)
        if 'load' in op and not i.lds: i.w=R[0]; i.r=set().union(*R[1:])
        elif 'atomic' in op:
            i.r=set().union(*R)
            if 'sc0' in mods: i.w=R[0]
        else: i.r=set().union(*R)
        i.wide=('store' in op) and ('x3' in op or 'x4' in op)
        if i.wide: i.data=R[0] if op.startswith('buffer') else R[1]
    elif op.startswith('s_'):
        i.kind='salu'
        if op.startswith('s_cbranch') or op=='s_branch': i.kind='br'; i.tgt=ops[0]
        elif op in('s_waitcnt','s_barrier','s_endpgm','s_setprio','s_sleep'): pass
        elif op.startswith('s_cmp') or op.startswith('s_bitcmp'): i.r=set().union(*R)
        else:
            i.w=R[0] if R else set(); i.r=set().union(*R[1:]) if len(R)>1 else set()
            if 'saveexec' in op: i.w|={('x',0)}
    else: raise Exception('unknown '+t)
    return i
T={4:(6,8,8,3),8:(10,12,12,7),16:(18,20,20,15)}
def need(a,b):
    n=0
    if a.kind=='valu':
        vw={x for x in a.w if x[0] in 'va'}; sw={x for x in a.w if x[0]=='s'}
        if b.kind=='mfma' and vw&b.r: n=max(n,2)
        if b.kind=='mfma' and ('x',0) in a.w: n=max(n,4)
        if b.kind=='valu':
            if a.trans and not b.trans and vw&b.r: n=max(n,1)
            if 'permlane' in b.op and vw&b.r: n=max(n,2)
            if b.dpp and vw&b.r: n=max(n,2)
            if ('readfirstlane' in b.op or 'readlane' in b.op) and vw&b.r: n=max(n,1)
            if sw&b.r: n=max(n,2)
            if ('sdwa' in a.op or 'op_sel' in a.mods) and vw&(b.r|b.w): n=max(n,1)
            if ('x',0) in a.w and (b.dpp): n=max(n,5)
            if ('x',0) in a.w and ('lane' in b.op): n=max(n,4)
        if b.kind=='vmem' and sw&b.r: n=max(n,5)
    if a.kind=='mfma':
        pc,pab,pv,pw=T[a.p]
        if b.kind=='mfma':
            if a.w&b.C and not (a.w==b.C and a.p==b.p): n=max(n,pc)
            if a.w&(b.A|b.B): n=max(n,pab)
        elif b.kind in('valu','ds','vmem'):
            if a.w&(b.r|b.w): n=max(n,pv)
            if b.kind=='valu' and a.C&b.w: n=max(n,pw)
    if a.kind=='salu' and ('m',0) in a.w and b.kind=='vmem' and b.lds: n=max(n,1)
    if a.kind=='vmem' and a.wide and a.data&b.w and b.kind!='mfma': n=max(n,2)
    return n
def check(text):
    ins=[]; lab={}
    for ln in text.split('\n'):
        i=parse(ln)
        if i is None: continue
        if i.label is not None: lab[i.label]=len(ins); continue
        ins.append(i)
    errs=[]
    def succ(k):
        i=ins[k]
        if i.op=='s_endpgm': return []
        if i.kind=='br':
            t=[lab[i.tgt]] if i.tgt in lab else []
            return t if i.op=='s_branch' else t+[k+1]
        return [k+1]
    for k,a in enumerate(ins):
        if a.kind not in('valu','mfma','salu','vmem'): continue
        if a.kind=='salu' and ('m',0) not in a.w: continue
        if a.kind=='vmem' and not a.wide: continue
        lim=21 if a.kind=='mfma' else 6
        seen={}
        st=[(j,0) for j in succ(k)]
        while st:
            j,d=st.pop()
            if j>=len(ins) or d>=lim: continue
            if seen.get(j,99)<=d: continue
            seen[j]=d
            b=ins[j]
            n=need(a,b)
            if n>d: errs.append(f'hazard: need {n} have {d}: [{k}] {a.txt}  ->  [{j}] {b.txt}')
            for q in succ(j): st.append((q,d+b.ws))
    return errs
if __name__=='__main__':
    import sys
    e=check(open(sys.argv[1]).read())
    print('\n'.join(e) if e else 'no hazards')
```

```python
import sys, math, struct
sys.path.insert(0,'gen')
import hz
NAME='concat_heads__spectral_fnet__softmax_full_mha__prompt'
OUT='cdna_kernels/'+NAME+'.s'

WS_QKV=0
WS_G=0x700000
WS_O=0x980000
WS_W=0xBC0000
WOP_CB=82944

def f2u(x): return struct.unpack('<I',struct.pack('<f',x))[0]
QSCALE=f2u(18**-0.5*math.log2(math.e))

class Em:
    def __init__(s): s.l=[]; s.n=0
    def __call__(s,t):
        for x in t.strip('\n').split('\n'):
            x=x.strip()
            if x: s.l.append('  '+x)
    def lab(s,t): s.l.append(t+':')
    def uniq(s,p): s.n+=1; return f'.L{p}_{s.n}'
    def text(s): return '\n'.join(s.l)+'\n'
def v(i,n=1): return f'v{i}' if n==1 else f'v[{i}:{i+n-1}]'
def s(i,n=1): return f's{i}' if n==1 else f's[{i}:{i+n-1}]'

S_WAVE=3
SRD_WS=4
P_AX,P_SRE,P_SIM,P_HRE,P_HIM,P_BX,P_WQ,P_WO,P_OUT,P_DBG,P_WS=8,10,12,14,16,18,20,22,24,26,28
SRD_BX,SRD_WQ,SRD_AX,SRD_HRE,SRD_HIM,SRD_SRE,SRD_SIM,SRD_WO,SRD_OUT=32,36,40,44,48,52,56,60,64
S_XCD,S_SLOT=68,69
ST=70

def srd(e,d,p,size):
    e(f's_mov_b32 s{d}, s{p}\ns_mov_b32 s{d+1}, s{p+1}\ns_mov_b32 s{d+2}, {size}\ns_mov_b32 s{d+3}, 0x20000')

def prologue(e,endlab,srds):
    e(f's_cmp_lt_u32 s2, 256\ns_cbranch_scc0 {endlab}')
    e('s_load_dwordx16 s[8:23], s[0:1], 0\ns_load_dwordx4 s[24:27], s[0:1], 64\ns_load_dwordx2 s[28:29], s[0:1], 80')
    e('v_lshrrev_b32 v1, 6, v0\nv_and_b32 v0, 63, v0')
    e(f'v_readfirstlane_b32 s{S_WAVE}, v1')
    e(f's_and_b32 s{S_XCD}, s2, 7\ns_lshr_b32 s{S_SLOT}, s2, 3')
    e('s_waitcnt lgkmcnt(0)')
    tab={'ws':(SRD_WS,P_WS,0x10000000),'bx':(SRD_BX,P_BX,2359296),'wq':(SRD_WQ,P_WQ,1990656),'ax':(SRD_AX,P_AX,2359296),
         'hre':(SRD_HRE,P_HRE,663552),'him':(SRD_HIM,P_HIM,663552),'sre':(SRD_SRE,P_SRE,8388608),'sim':(SRD_SIM,P_SIM,8388608),
         'wo':(SRD_WO,P_WO,663552),'out':(SRD_OUT,P_OUT,4718592)}
    for k in srds: srd(e,*tab[k])

def swap23(e,dst,src,t1,t2):
    e(f'v_and_b32 v{t1}, 4, v{src}\nv_lshlrev_b32 v{t1}, 1, v{t1}\nv_and_b32 v{t2}, 8, v{src}\nv_lshrrev_b32 v{t2}, 1, v{t2}')
    e(f'v_and_b32 v{dst}, 0x13, v{src}\nv_or3_b32 v{dst}, v{dst}, v{t1}, v{t2}')

def prepack(e):
    done=e.uniq('pp_done'); nar=e.uniq('pp_nar'); go=e.uniq('pp_go')
    T,R,STEP,H,KB,D=ST,ST+1,ST+2,ST+3,ST+4,ST+5
    e(f's_lshl_b32 s{T}, s{S_WAVE}, 8\ns_add_u32 s{T}, s{T}, s2\ns_cmp_lt_u32 s{T}, 648\ns_cbranch_scc0 {done}')
    e(f's_cmp_lt_u32 s{T}, 576\ns_cbranch_scc0 {nar}')
    e(f's_lshr_b32 s{R}, s{T}, 3\ns_and_b32 s{D}, s{T}, 7')
    e('v_and_b32 v2, 31, v0')
    swap23(e,3,2,4,5)
    e(f'v_and_b32 v4, 32, v0\nv_add_u32 v3, v3, v4\ns_lshl_b32 s{T}, s{D}, 6\nv_add_u32 v3, s{T}, v3\nv_lshlrev_b32 v3, 1, v3')
    e(f's_mul_i32 s{D}, s{D}, {WOP_CB}\ns_lshr_b32 s{STEP}, s{R}, 1\ns_and_b32 s{H}, s{R}, 1')
    e(f's_lshl_b32 s{T}, s{STEP}, 11\ns_add_u32 s{D}, s{D}, s{T}\ns_lshl_b32 s{T}, s{H}, 9\ns_add_u32 s{D}, s{D}, s{T}')
    e(f'v_lshlrev_b32 v2, 4, v2\nv_lshlrev_b32 v4, 5, v4\nv_add_u32 v2, v2, v4')
    e(f's_branch {go}')
    e.lab(nar)
    e(f's_sub_u32 s{R}, s{T}, 576\ns_lshr_b32 s{STEP}, s{R}, 1\ns_and_b32 s{H}, s{R}, 1')
    e('v_add_u32 v3, 512, v0\nv_lshlrev_b32 v3, 1, v3')
    e(f'v_lshrrev_b32 v2, 3, v0\nv_mul_u32_u24 v2, {WOP_CB}, v2\nv_and_b32 v4, 7, v0\nv_lshlrev_b32 v4, 4, v4\nv_add_u32 v2, v2, v4')
    e(f's_lshl_b32 s{D}, s{R}, 7\ns_add_u32 s{D}, s{D}, 73728')
    e.lab(go)
    e(f's_add_u32 s{D}, s{D}, {WS_W}')
    e(f's_mul_i32 s{KB}, s{STEP}, 18\ns_lshl_b32 s{T}, s{H}, 2\ns_add_u32 s{KB}, s{KB}, s{T}')
    e(f's_sub_u32 s{R}, s{STEP}, 32\ns_lshl_b32 s{R}, s{R}, 3\ns_add_u32 s{R}, s{R}, s{T}\ns_mul_i32 s{R}, s{R}, 18\ns_add_u32 s{R}, s{R}, 16')
    e(f's_cmp_lt_u32 s{STEP}, 32\ns_cselect_b32 s{KB}, s{KB}, s{R}\ns_mul_i32 s{KB}, s{KB}, 1152')
    dm=[0,1,2,3,8,9,10,11]; dl=[0,1,18,19,36,37,54,55]
    for j in range(8):
        e(f's_cmp_lt_u32 s{STEP}, 32\ns_cselect_b32 s{T}, {dm[j]*1152}, {dl[j]*1152 if dl[j]!=dm[j] else dm[j]*1152}' if dm[j]==dl[j] else
          f's_mov_b32 s{R}, {dl[j]*1152}\ns_cmp_lt_u32 s{STEP}, 32\ns_cselect_b32 s{T}, {dm[j]*1152}, s{R}')
        e(f's_add_u32 s{T}, s{T}, s{KB}')
        e(f'buffer_load_ushort v{16+j}, v3, s[{SRD_WO}:{SRD_WO+3}], s{T} offen')
    e('s_waitcnt vmcnt(0)')
    for j in range(4): e(f'v_lshl_or_b32 v{8+j}, v{17+2*j}, 16, v{16+2*j}')
    e(f'buffer_store_dwordx4 v[8:11], v2, s[{SRD_WS}:{SRD_WS+3}], s{D} offen')
    e.lab(done)

def k1(e):
    END='.Lk1_end'
    prologue(e,END,['ws','bx','wq','ax','hre','him','sre','sim','wo'])
    RB,CB,ROT,UJ=ST+10,ST+11,ST+12,ST+13
    SP=ST+14
    e(f's_and_b32 s{ST}, s{S_XCD}, 3\ns_lshl_b32 s{ST}, s{ST}, 2\ns_and_b32 s{ST+1}, s{S_SLOT}, 3\ns_add_u32 s{RB}, s{ST}, s{ST+1}')
    e(f's_lshr_b32 s{ST}, s{S_XCD}, 2\ns_mul_i32 s{ST}, s{ST}, 7\ns_lshr_b32 s{ST+2}, s{S_SLOT}, 2\ns_add_u32 s{CB}, s{ST}, s{ST+2}')
    e(f's_lshl_b32 s{ST+1}, s{ST+1}, 1\ns_add_u32 s{ROT}, s{ST+1}, s{ST+2}\ns_sub_u32 s{ST}, s{ROT}, 9\ns_cmp_ge_u32 s{ROT}, 9\ns_cselect_b32 s{ROT}, s{ST}, s{ROT}')
    e(f's_sub_u32 s{ST}, s{S_SLOT}, 28\ns_mul_i32 s{ST}, s{ST}, 3\ns_add_u32 s{ST}, s{ST}, 28\ns_cmp_ge_u32 s{S_SLOT}, 28\ns_cselect_b32 s{UJ}, s{ST}, s{S_SLOT}\ns_cselect_b32 s{SP}, 3, 0')
    e(f's_cmp_ge_u32 s{S_WAVE}, 4\ns_cbranch_scc1 .Lk1_loader')
    prepack(e)
    e(f's_cmp_lg_u32 s{SP}, 0\ns_cbranch_scc1 .Lk1_spare_c')
    ACC=64; FA=[16,32]; AA=8; BA=12
    WR,WC=ST,ST+1
    e(f's_and_b32 s{WR}, s{S_WAVE}, 1\ns_lshr_b32 s{WC}, s{S_WAVE}, 1')
    e('v_and_b32 v2, 31, v0')
    swap23(e,3,2,4,5)
    e(f'v_lshrrev_b32 v4, 1, v3\nv_and_b32 v4, 7, v4\nv_lshrrev_b32 v5, 5, v0\nv_xor_b32 v4, v4, v5')
    e(f's_lshl_b32 s{ST+2}, s{WR}, 13\nv_lshlrev_b32 v3, 7, v3\nv_add_u32 v3, s{ST+2}, v3')
    for st in range(4):
        e(f'v_xor_b32 v6, {2*st}, v4\nv_lshl_add_u32 v{AA+st}, v6, 4, v3')
    e('v_and_b32 v3, 15, v0\nv_lshrrev_b32 v4, 2, v3')
    e('v_lshrrev_b32 v5, 5, v0\nv_lshl_add_u32 v5, v5, 3, v4\nv_lshlrev_b32 v5, 8, v5')
    e('v_and_b32 v6, 3, v0\nv_lshlrev_b32 v6, 3, v6\nv_and_b32 v7, 16, v0\nv_lshl_add_u32 v6, v7, 1, v6\nv_add_u32 v5, v5, v6')
    e('v_add_u32 v5, 16384, v5')
    e(f's_lshl_b32 s{ST+2}, s{WC}, 1')
    for b in range(2):
        e(f's_add_u32 s{ST+3}, s{ST+2}, {b}\nv_xor_b32 v6, s{ST+3}, v4\nv_lshl_add_u32 v{BA+b}, v6, 6, v5')
    e(f's_lshl_b32 s{ST+2}, s{CB}, 7\ns_lshl_b32 s{ST+3}, s{WC}, 6\ns_add_u32 s{ST+2}, s{ST+2}, s{ST+3}')
    CBASE=ST+5
    e(f's_mov_b32 s{CBASE}, s{ST+2}')
    e(f'v_add_u32 v3, s{ST+2}, v2\nv_lshrrev_b32 v4, 1, v3\nv_lshlrev_b32 v4, 13, v4\nv_and_b32 v3, 1, v3\nv_lshl_add_u32 v4, v3, 5, v4')
    e(f'v_lshrrev_b32 v5, 5, v0\nv_lshl_add_u32 v4, v5, 4, v4')
    e(f's_lshl_b32 s{ST+2}, s{RB}, 9\ns_lshl_b32 s{ST+3}, s{WR}, 8\ns_add_u32 s{ST+2}, s{ST+2}, s{ST+3}\nv_add_u32 v14, s{ST+2}, v4')
    for r in range(64): e(f'v_mov_b32 v{ACC+r}, 0')
    def rd(st,buf,k):
        f=FA[buf]
        if k==0: return f'ds_read_b128 {v(f,4)}, v{AA+st}'
        if k==5: return f'ds_read_b128 {v(f+4,4)}, v{AA+st} offset:4096'
        b=(k-1)//2; u=(k-1)%2
        return f'ds_read_b64_tr_b16 {v(f+8+4*b+2*u,2)}, v{BA+b} offset:{st*4096+u*1024}'
    def mf(buf,a,b):
        f=FA[buf]; c=ACC+16*(2*a+b)
        return f'v_mfma_f32_32x32x16_bf16 {v(c,16)}, {v(f+4*a,4)}, {v(f+8+4*b,4)}, {v(c,16)}'
    CNT,SL,DL=ST+2,ST+3,ST+4
    e(f's_mov_b32 s{CNT}, 0\ns_mov_b32 s{SL}, 0')
    e('s_barrier')
    for k in range(6): e(rd(0,0,k))
    e.lab('.Lk1_loop')
    def group(buf,nst,split,waits=True):
        sp=[range(0,3),range(3,5),range(5,6)] if split==0 else [range(0,3),range(3,6),range(0)]
        w=[3,4,5] if waits else [None]*3
        order=[(0,0),(0,1),(1,0),(1,1)]
        for i,(a,b) in enumerate(order):
            if i<3 and w[i] is not None: e(f's_waitcnt lgkmcnt({w[i] if not (split==1 and i==2) else 6})')
            e(mf(buf,a,b))
            if i<3:
                for k in sp[i]: e(rd(nst,1-buf,k))
    group(0,1,0); group(1,2,0); group(0,3,1)
    e(f's_add_u32 s{SL}, s{SL}, 1\ns_cmp_eq_u32 s{SL}, 5\ns_cselect_b32 s{DL}, -5, 0\ns_cselect_b32 s{SL}, 0, s{SL}\ns_add_u32 s{DL}, s{DL}, 1\ns_lshl_b32 s{DL}, s{DL}, 15')
    for i in range(6): e(f'v_add_u32 v{AA+i}, s{DL}, v{AA+i}')
    e('s_waitcnt lgkmcnt(0)\ns_barrier')
    group(1,0,0,waits=False)
    e(f's_add_u32 s{CNT}, s{CNT}, 1\ns_cmp_lt_u32 s{CNT}, 9\ns_cbranch_scc1 .Lk1_loop')
    e(f's_cmp_ge_u32 s{CBASE}, 1728\ns_cbranch_scc1 .Lk1_epi_done')
    e('s_waitcnt lgkmcnt(0)\ns_nop 7\ns_nop 2')
    e(f's_cmp_ge_u32 s{CBASE}, 576\ns_cbranch_scc1 .Lk1_noscale')
    e(f's_mov_b32 s{ST+6}, {QSCALE}')
    for r in range(64): e(f'v_mul_f32 v{ACC+r}, s{ST+6}, v{ACC+r}')
    e.lab('.Lk1_noscale')
    e(f's_mov_b32 s{ST+6}, 131072')
    t=16
    for a in range(2):
        for b in range(2):
            for hf in range(2):
                c=ACC+16*(2*a+b)+8*hf
                for q in range(4): e(f'v_cvt_pk_bf16_f32 v{t+q}, v{c+2*q}, v{c+2*q+1}')
                so='0' if b==0 else f's{ST+6}'
                e(f'buffer_store_dwordx4 {v(t,4)}, v14, s[{SRD_WS}:{SRD_WS+3}], {so} offen offset:{a*128+hf*64}')
                t+=4
    e.lab('.Lk1_epi_done')
    e('s_waitcnt lgkmcnt(0)')
    for i in range(4): e('s_barrier')
    e(f's_branch {END}')
    e.lab('.Lk1_spare_c')
    for i in range(17): e('s_barrier')
    e(f's_branch {END}')
    e.lab('.Lk1_loader')
    LW=ST;
    e(f's_sub_u32 s{LW}, s{S_WAVE}, 4')
    e('v_and_b32 v2, 15, v0\nv_lshlrev_b32 v2, 18, v2\nv_lshrrev_b32 v3, 4, v0\nv_lshl_add_u32 v2, v3, 4, v2')
    e(f's_mov_b32 s{ST+1}, 4194304')
    e(f'buffer_load_dwordx4 v[16:19], v2, s[{SRD_SRE}:{SRD_SRE+3}], 0 offen\nbuffer_load_dwordx4 v[20:23], v2, s[{SRD_SRE}:{SRD_SRE+3}], s{ST+1} offen')
    e(f'buffer_load_dwordx4 v[24:27], v2, s[{SRD_SIM}:{SRD_SIM+3}], 0 offen\nbuffer_load_dwordx4 v[28:31], v2, s[{SRD_SIM}:{SRD_SIM+3}], s{ST+1} offen')
    XV,WV,FX,FH=32,36,40,42
    MB=ST+1
    SX,SW,KC,SF,FC=ST+2,ST+3,ST+4,ST+5,ST+6
    e(f's_lshl_b32 s{MB}, s{LW}, 12')
    e('v_and_b32 v4, 7, v0\nv_lshrrev_b32 v5, 4, v0\nv_xor_b32 v4, v4, v5\nv_xor_b32 v5, 4, v4\nv_lshlrev_b32 v4, 4, v4\nv_lshlrev_b32 v5, 4, v5')
    e(f's_lshl_b32 s{ST+7}, s{RB}, 7\ns_lshl_b32 s{ST+8}, s{LW}, 5\ns_add_u32 s{ST+7}, s{ST+7}, s{ST+8}')
    e(f'v_lshrrev_b32 v6, 3, v0\nv_add_u32 v6, s{ST+7}, v6\nv_mul_u32_u24 v6, 1152, v6')
    for i in range(4):
        e(f'v_add_u32 v{XV+i}, {i*(8*1152-1024)}, v6\nv_add_u32 v{XV+i}, v{XV+i}, v{4+(i&1)}')
    e(f'v_lshrrev_b32 v6, 4, v0\nv_lshlrev_b32 v7, 2, v6\nv_and_b32 v8, 15, v0\nv_xor_b32 v7, v7, v8\nv_lshlrev_b32 v7, 4, v7')
    e(f's_lshl_b32 s{ST+7}, s{LW}, 4\nv_add_u32 v6, s{ST+7}, v6\nv_mul_u32_u24 v6, 3456, v6\nv_add_u32 v6, v6, v7\ns_lshl_b32 s{ST+7}, s{CB}, 8\nv_add_u32 v6, s{ST+7}, v6')
    for i in range(4): e(f'v_add_u32 v{WV+i}, {i*(4*3456-1024)}, v6')
    e(f's_mov_b32 s{KC}, s{ROT}')
    e(f's_cmp_lg_u32 s{SP}, 0\ns_cbranch_scc1 .Lk1_funit')
    def issue_chunk(slot):
        e(f's_lshl_b32 s{SX}, s{KC}, 7\ns_mul_i32 s{SW}, s{KC}, 221184\ns_add_u32 m0, s{MB}, {slot*32768}')
        e(f's_add_u32 s{KC}, s{KC}, 1')
        for i in range(4): e(f'buffer_load_dwordx4 v{XV+i}, s[{SRD_BX}:{SRD_BX+3}], s{SX} offen offset:{i*1024} lds')
        e(f's_add_u32 m0, s{MB}, {slot*32768+16384}\ns_cmp_eq_u32 s{KC}, 9')
        for i in range(4): e(f'buffer_load_dwordx4 v{WV+i}, s[{SRD_WQ}:{SRD_WQ+3}], s{SW} offen offset:{i*1024} lds')
        e(f's_cselect_b32 s{KC}, 0, s{KC}')
    for c in range(5): issue_chunk(c)
    e.lab('.Lk1_funit')
    PP,ET=ST+7,ST+8
    e(f's_and_b32 s{PP}, s{UJ}, 3\ns_lshl_b32 s{ST+9}, s{S_XCD}, 2\ns_add_u32 s{PP}, s{PP}, s{ST+9}\ns_lshr_b32 s{ET}, s{UJ}, 2')
    e('v_lshrrev_b32 v6, 3, v0\nv_lshrrev_b32 v7, 2, v6\nv_and_b32 v6, 3, v6\nv_lshl_add_u32 v6, v7, 3, v6')
    e(f's_and_b32 s{ST+9}, s{LW}, 1\ns_lshl_b32 s{ST+9}, s{ST+9}, 8\ns_lshr_b32 s{ST+15}, s{LW}, 1\ns_add_u32 s{ST+9}, s{ST+9}, s{ST+15}\ns_lshl_b32 s{ST+15}, s{PP}, 1\ns_add_u32 s{ST+9}, s{ST+9}, s{ST+15}')
    e(f'v_lshlrev_b32 v6, 6, v6\nv_add_u32 v6, s{ST+9}, v6\nv_mul_u32_u24 v6, 1152, v6')
    e(f'v_add_u32 v{FX}, v6, v4\nv_add_u32 v{FX+1}, {16*64*1152-1024}, v6\nv_add_u32 v{FX+1}, v{FX+1}, v5')
    e(f's_lshl_b32 s{ST+9}, s{ET}, 5\ns_lshl_b32 s{ST+15}, s{LW}, 3\ns_add_u32 s{ST+9}, s{ST+9}, s{ST+15}')
    e(f'v_lshrrev_b32 v6, 3, v0\nv_add_u32 v6, s{ST+9}, v6\nv_mul_u32_u24 v6, 1152, v6\nv_add_u32 v{FH}, v6, v4\nv_add_u32 v{FH+1}, v6, v5')
    e(f'v_and_b32 v6, 7, v0\nv_add_u32 v6, s{ST+9}, v6\nv_lshlrev_b32 v6, 2, v6\nv_lshrrev_b32 v7, 4, v0\nv_mul_u32_u24 v7, 163840, v7\nv_add_u32 v6, v6, v7')
    e(f'v_bfe_u32 v7, v0, 3, 1\nv_mul_u32_u24 v7, 1310720, v7\nv_add_u32 v6, v6, v7\ns_mul_i32 s{ST+9}, s{PP}, 1280\ns_add_u32 s{ST+9}, s{ST+9}, {WS_G}\nv_add_u32 v44, s{ST+9}, v6')
    e(f's_mov_b32 s{FC}, s{ROT}\ns_lshr_b32 s{ST+9}, s{MB}, 1')
    MB2=ST+9
    FB=[131072,147456,0,16384,32768,49152,65536,81920,98304]
    def issue_f(f):
        e(f's_lshl_b32 s{SF}, s{FC}, 7\ns_add_u32 m0, s{MB2}, {FB[f]}\ns_add_u32 s{FC}, s{FC}, 1')
        e(f'buffer_load_dwordx4 v{FX}, s[{SRD_AX}:{SRD_AX+3}], s{SF} offen lds\nbuffer_load_dwordx4 v{FX+1}, s[{SRD_AX}:{SRD_AX+3}], s{SF} offen offset:1024 lds')
        e(f's_add_u32 m0, s{MB2}, {FB[f]+8192}\ns_cmp_eq_u32 s{FC}, 9\nbuffer_load_dwordx4 v{FH}, s[{SRD_HRE}:{SRD_HRE+3}], s{SF} offen lds')
        e(f's_cselect_b32 s{FC}, 0, s{FC}\ns_add_u32 m0, s{MB2}, {FB[f]+9216}\ns_nop 0\nbuffer_load_dwordx4 v{FH+1}, s[{SRD_HIM}:{SRD_HIM+3}], s{SF} offen lds')
    e(f's_cmp_lg_u32 s{SP}, 0\ns_cbranch_scc1 .Lk1_spare_issue')
    e('s_waitcnt vmcnt(32)\ns_barrier')
    for c in range(1,9):
        e('s_waitcnt vmcnt(24)\ns_barrier')
        if c+4<9: issue_chunk((c+4)%5)
        else: issue_f(2*(c-5)); issue_f(2*(c-5)+1)
    e('s_branch .Lk1_fcomp')
    e.lab('.Lk1_spare_issue')
    for f in range(8): issue_f(f)
    e.lab('.Lk1_fcomp')
    e('v_and_b32 v6, 15, v0\nv_lshrrev_b32 v7, 1, v6\nv_lshrrev_b32 v8, 4, v0\nv_xor_b32 v7, v7, v8\nv_lshlrev_b32 v6, 7, v6\nv_lshl_add_u32 v46, v7, 4, v6\nv_xor_b32 v47, 64, v46')
    e(f'v_add_u32 v48, s{MB2}, v46\nv_add_u32 v49, s{MB2}, v47')
    e(f'v_add_u32 v46, {FB[0]}, v46\nv_add_u32 v47, {FB[0]}, v47\nv_add_u32 v48, {FB[0]+8192}, v48\nv_add_u32 v49, {FB[0]+8192}, v49')
    FAC=64
    for r in range(16): e(f'v_mov_b32 v{FAC+r}, 0')
    FR=[96,116]
    waits=[24,20,12,4,0]
    cur=FB[0]
    for d in range(5):
        e(f's_waitcnt vmcnt({waits[d]})\ns_barrier')
        if d==0: issue_f(8)
        base=FB[2*d]
        if base!=cur:
            dl=(base-cur)&0xffffffff
            for i in range(4): e(f'v_add_u32 v{46+i}, {dl}, v{46+i}')
            cur=base
        steps=[(ff,st) for ff in range(2 if d<4 else 1) for st in range(2)]
        def rdf(i):
            ff,st=steps[i]; fr=FR[i&1]
            e(f'ds_read_b128 {v(fr+16,4)}, v{48+st} offset:{ff*16384}')
            for t in range(4): e(f'ds_read_b128 {v(fr+4*t,4)}, v{46+st} offset:{ff*16384+t*2048}')
        rdf(0)
        for i in range(len(steps)):
            if i+1<len(steps):
                rdf(i+1); e('s_waitcnt lgkmcnt(5)')
            else: e('s_waitcnt lgkmcnt(0)')
            fr=FR[i&1]
            for t in range(4): e(f'v_mfma_f32_16x16x32_bf16 {v(FAC+4*t,4)}, {v(fr+4*t,4)}, {v(fr+16,4)}, {v(FAC+4*t,4)}')
    e('v_bfe_u32 v6, v0, 3, 1\nv_mul_u32_u24 v6, 0x8000, v6\nv_lshl_or_b32 v6, v6, 16, v6\ns_nop 4')
    DP=80; DN=88
    for s2 in range(2):
        for q in range(4):
            c=FAC+8*s2+2*q
            e(f'v_cvt_pk_bf16_f32 v{DP+4*s2+q}, v{c}, v{c+1}')
    for q in range(8): e(f'v_xor_b32 v{DN+q}, v6, v{DP+q}')
    e('s_nop 1')
    RR=96; II=112
    for s2 in range(2):
        for th in range(2):
            e(f'v_mfma_f32_16x16x32_bf16 {v(RR+8*s2+4*th,4)}, {v(16+4*th,4)}, {v(DN+4*s2,4)}, 0')
            e(f'v_mfma_f32_16x16x32_bf16 {v(II+8*s2+4*th,4)}, {v(24+4*th,4)}, {v(DP+4*s2,4)}, 0')
    e('s_nop 7')
    for q in range(16): e(f'v_subrev_f32_dpp v{RR+q}, v{II+q}, v{RR+q} row_ror:8 row_mask:0xf bank_mask:0xf')
    for q in range(8):
        e(f'v_cvt_pk_bf16_f32 v{DP+q}, v{RR+q}, v{RR+8+q}')
        th,r=q//4,q%4
        e(f's_mov_b32 s{SF}, {(16*th+r)*40960}')
        e(f'buffer_store_dword v{DP+q}, v44, s[{SRD_WS}:{SRD_WS+3}], s{SF} offen')
    e(f's_cmp_le_u32 s{SP}, 1\ns_cbranch_scc1 {END}')
    e(f's_sub_u32 s{SP}, s{SP}, 1\ns_add_u32 s{UJ}, s{UJ}, 1\ns_barrier\ns_branch .Lk1_funit')
    e.lab(END)
    e('s_endpgm')

L_K=0; L_V=73728; L_Q=149760; L_ONE=158976; L_FLAG=160000
SX_,SY_,NM,OA,PB,KF,KX,VF,Q0,Q1,QX=32,64,96,128,160,176,180,184,192,196,200
AE,AO,AXr,AV,IV=204,205,206,207,208
def attention(e):
    HEAD,QB,KH,QQ,MODE,IT=ST,ST+1,ST+2,ST+3,ST+4,ST+5
    T=ST+6
    e(f's_lshl_b32 s{HEAD}, s{S_XCD}, 2\ns_lshr_b32 s{T}, s{S_SLOT}, 3\ns_add_u32 s{HEAD}, s{HEAD}, s{T}\ns_and_b32 s{QB}, s{S_SLOT}, 7')
    e(f's_lshr_b32 s{KH}, s{S_WAVE}, 2\ns_and_b32 s{QQ}, s{S_WAVE}, 3\ns_mov_b32 s{MODE}, 0')
    e.lab('.Lat_restart')
    e('v_lshrrev_b32 v5, 3, v0\nv_lshlrev_b32 v5, 7, v5')
    e('v_and_b32 v6, 2, v0\nv_lshlrev_b32 v6, 5, v6\nv_and_b32 v7, 4, v0\nv_lshl_add_u32 v6, v7, 3, v6\nv_and_b32 v7, 1, v0\nv_lshl_add_u32 v6, v7, 4, v6')
    e('v_add_u32 v3, v5, v6')
    e(f's_and_b32 s{T}, s{S_WAVE}, 1\ns_lshl_b32 s{T}, s{T}, 7\nv_xor_b32 v2, s{T}, v3')
    e('v_and_b32 v6, 4, v0\nv_lshlrev_b32 v6, 4, v6\nv_and_b32 v7, 1, v0\nv_lshl_add_u32 v6, v7, 5, v6\nv_and_b32 v7, 2, v0\nv_lshl_add_u32 v6, v7, 3, v6\nv_add_u32 v4, v5, v6')
    GB,G8,MK,MV=T+1,T+2,T+3,T+4
    e(f's_mul_i32 s{T}, s{HEAD}, 9\ns_add_u32 s{GB}, s{T}, s{S_WAVE}\ns_lshl_b32 s{GB}, s{GB}, 13\ns_add_u32 s{G8}, s{T}, 8\ns_lshl_b32 s{G8}, s{G8}, 13')
    e(f's_lshl_b32 s{MK}, s{S_WAVE}, 10\ns_mul_i32 s{MV}, s{S_WAVE}, 1056')
    SO=T+5
    blk=[0]
    def dma(kind,tg):
        gofs={'q':0,'k':288*8192,'v':576*8192}[kind]
        if kind=='q': ld=L_Q
        elif kind=='k': ld=L_K+tg*9216
        else: ld=L_V+tg*9504
        def so(base):
            if kind=='q': e(f's_lshl_b32 s{SO}, s{QB}, 10\ns_add_u32 s{SO}, s{SO}, s{base}')
            else: e(f's_add_u32 s{SO}, s{base}, {gofs+tg*1024}')
        e(f's_add_u32 m0, s{MV if kind=="v" else MK}, {ld}')
        so(GB)
        e(f'buffer_load_dwordx4 v{4 if kind=="v" else 2}, s[{SRD_WS}:{SRD_WS+3}], s{SO} offen lds')
        sk=e.uniq('dma')
        e(f's_cmp_lg_u32 s{S_WAVE}, {blk[0]%8}\ns_cbranch_scc1 {sk}')
        e(f's_mov_b32 m0, {ld+8*(1056 if kind=="v" else 1024)}')
        so(G8)
        e(f'buffer_load_dwordx4 v{4 if kind=="v" else 3}, s[{SRD_WS}:{SRD_WS+3}], s{SO} offen lds')
        e.lab(sk)
        blk[0]+=1
    for a in [('q',0),('k',0),('k',4),('v',0),('v',4)]: dma(*a)
    st1=[(k,tg) for tg in (1,5,2,6,3,7) for k in 'kv']
    for i,(kind,tg) in enumerate(st1):
        gofs={'k':288*8192,'v':576*8192}[kind]
        ld=(L_K+tg*9216) if kind=='k' else (L_V+tg*9504)
        sk=e.uniq('dma')
        e(f's_cmp_lg_u32 s{S_WAVE}, {(5+i)%8}\ns_cbranch_scc1 {sk}')
        e(f's_mov_b32 m0, {ld+8*(1056 if kind=="v" else 1024)}\ns_add_u32 s{SO}, s{G8}, {gofs+tg*1024}')
        e(f'buffer_load_dwordx4 v{4 if kind=="v" else 3}, s[{SRD_WS}:{SRD_WS+3}], s{SO} offen lds')
        e.lab(sk)
    for kind,tg in st1:
        gofs={'k':288*8192,'v':576*8192}[kind]
        ld=(L_K+tg*9216) if kind=='k' else (L_V+tg*9504)
        e(f's_add_u32 m0, s{MV if kind=="v" else MK}, {ld}\ns_add_u32 s{SO}, s{GB}, {gofs+tg*1024}')
        e(f'buffer_load_dwordx4 v{4 if kind=="v" else 2}, s[{SRD_WS}:{SRD_WS+3}], s{SO} offen lds')
    e('v_mov_b32 v8, 0x3f803f80\nv_mov_b32 v9, v8\nv_mov_b32 v10, v8\nv_mov_b32 v11, v8\nv_lshlrev_b32 v5, 4, v0\nv_mov_b32 v12, 0')
    e(f's_cmp_lg_u32 s{S_WAVE}, 0\ns_cbranch_scc1 .Lat_noones')
    e(f'ds_write_b128 v5, v[8:11] offset:{L_ONE-131072+0}' if False else f'v_add_u32 v5, {L_ONE}, v5\nds_write_b128 v5, v[8:11]\nv_mov_b32 v5, {L_FLAG}\nds_write_b32 v5, v12')
    e.lab('.Lat_noones')
    e('v_and_b32 v5, 3, v0')
    e('v_and_b32 v6, 1, v5\nv_lshlrev_b32 v6, 4, v6\nv_and_b32 v7, 2, v5\nv_lshl_add_u32 v6, v7, 2, v6')
    e('v_lshlrev_b32 v7, 3, v5')
    e('v_and_b32 v8, 16, v0\nv_lshlrev_b32 v8, 1, v8\nv_and_b32 v9, 4, v0\nv_lshl_add_u32 v8, v9, 4, v8')
    e('v_add_u32 v6, v6, v8\nv_add_u32 v7, v7, v8')
    e('v_lshrrev_b32 v9, 5, v0\nv_lshlrev_b32 v10, 12, v9\nv_bfe_u32 v11, v0, 3, 1\nv_mul_u32_u24 v12, 1152, v11\nv_add_u32 v10, v10, v12')
    KOFF=T+6
    e(f's_mul_i32 s{KOFF}, s{KH}, {4*9216}')
    e(f'v_add_u32 v13, v10, v6')
    e(f'v_add_u32 v{AE}, s{KOFF}, v13\nv_xor_b32 v{AO}, 128, v{AE}')
    e(f'v_lshlrev_b32 v12, 7, v9\nv_add_u32 v14, v12, v6\nv_add_u32 v14, 8192, v14\nv_add_u32 v{AXr}, s{KOFF}, v14')
    e(f's_lshl_b32 s{T}, s{QQ}, 8\ns_add_u32 s{T}, s{T}, {L_Q}\nv_add_u32 v15, v10, v7\nv_add_u32 v15, s{T}, v15\nv_xor_b32 v16, 128, v15')
    e(f'v_add_u32 v17, v12, v7\nv_add_u32 v17, 8192, v17\nv_add_u32 v17, s{T}, v17')
    e('v_and_b32 v5, 31, v0\nv_lshrrev_b32 v6, 1, v5\nv_mul_u32_u24 v6, 1056, v6\nv_and_b32 v7, 1, v5\nv_lshl_add_u32 v6, v7, 4, v6')
    e('v_add_u32 v7, -20, v5\nv_cmp_gt_u32 vcc, 8, v7\ns_nop 1\nv_cndmask_b32 v6, v6, 0, vcc' .replace('v_cndmask_b32 v6, v6, 0, vcc','v_cndmask_b32_e64 v6, v6, 0, vcc'))
    e(f's_mul_i32 s{T}, s{KH}, {4*9504}\ns_add_u32 s{T}, s{T}, {L_V}\nv_add_u32 v6, s{T}, v6')
    e(f'v_cmp_lt_u32 s[{T+8}:{T+9}], 17, v5\ns_nop 1\ns_andn2_b64 vcc, s[{T+8}:{T+9}], vcc')
    e(f'v_mov_b32 v7, {L_ONE}\nv_mov_b32 v8, 9504\nv_cndmask_b32 v6, v6, v7, vcc\nv_cndmask_b32_e64 v{IV}, v8, 0, vcc')
    e(f'v_lshl_add_u32 v{AV}, v9, 5, v6')
    for r in range(32): e(f'v_mov_b32 v{OA+r}, 0')
    for r in range(4): e(f'v_mov_b32 v{PB+12+r}, 0\nv_mov_b32 v{VF+4+r}, 0')
    e('s_waitcnt vmcnt(12) lgkmcnt(0)\ns_barrier')
    e(f'ds_read_b64_tr_b16 {v(Q0,2)}, v15\nds_read_b64_tr_b16 {v(Q0+2,2)}, v15 offset:2048\nds_read_b64_tr_b16 {v(Q1,2)}, v16\nds_read_b64_tr_b16 {v(Q1+2,2)}, v16 offset:2048\nds_read_b64_tr_b16 {v(QX,2)}, v17')
    e(f's_cmp_lg_u32 s{MODE}, 0\ns_cbranch_scc1 .Lat_truemax')
    e(f'ds_read_b64_tr_b16 {v(KF,2)}, v13\nds_read_b64_tr_b16 {v(KF+2,2)}, v13 offset:2048\nds_read_b64_tr_b16 {v(KX,2)}, v14')
    e(f's_waitcnt lgkmcnt(0)\nv_mov_b32 v{QX+1}, 0')
    e(f'v_mfma_f32_32x32x16_bf16 {v(SX_,16)}, {v(KF,4)}, {v(Q0,4)}, 0\nv_mfma_f32_32x32x16_bf16 {v(SX_+16,16)}, {v(KF,4)}, {v(Q1,4)}, 0')
    e('s_nop 7\ns_nop 1')
    e(f'v_mfma_f32_32x32x4_2b_bf16 {v(SX_,32)}, {v(KX,2)}, {v(QX,2)}, {v(SX_,32)} cbsz:1 abid:0')
    e(f'ds_read_b64_tr_b16 {v(KF,2)}, v{AE}\nds_read_b64_tr_b16 {v(KF+2,2)}, v{AE} offset:2048\nds_read_b64_tr_b16 {v(KX,2)}, v{AXr}\nds_read_b128 {v(VF,4)}, v{AV}')
    e('s_nop 7\ns_nop 7')
    for q in range(2):
        b=SX_+16*q
        e(f'v_max3_f32 v{20+q}, v{b}, v{b+1}, v{b+2}')
        for r in range(3,15,2): e(f'v_max3_f32 v{20+q}, v{20+q}, v{b+r}, v{b+r+1}')
        e(f'v_max_f32 v{20+q}, v{20+q}, v{b+15}')
    e(f'v_mov_b32 v24, 0xc2700000')
    e.lab('.Lat_gotmax')
    e('v_mov_b32 v22, v20\nv_mov_b32 v23, v21\ns_nop 1\nv_permlane32_swap_b32 v20, v22\nv_permlane32_swap_b32 v21, v23\ns_nop 1')
    e('v_max_f32 v20, v20, v22\nv_max_f32 v21, v21, v23\nv_sub_f32 v20, v24, v20\nv_sub_f32 v21, v24, v21')
    for r in range(32): e(f'v_mov_b32 v{NM+r}, v{20+r//16}')
    e('s_waitcnt lgkmcnt(0)\ns_nop 0')
    e(f'v_mfma_f32_32x32x16_bf16 {v(SX_,16)}, {v(KF,4)}, {v(Q0,4)}, {v(NM,16)}\nv_mfma_f32_32x32x16_bf16 {v(SX_+16,16)}, {v(KF,4)}, {v(Q1,4)}, {v(NM+16,16)}')
    e(f'ds_read_b64_tr_b16 {v(KF,2)}, v{AO}\nds_read_b64_tr_b16 {v(KF+2,2)}, v{AO} offset:2048')
    e('s_nop 7')
    e(f'v_mfma_f32_32x32x4_2b_bf16 {v(SX_,32)}, {v(KX,2)}, {v(QX,2)}, {v(SX_,32)} cbsz:1 abid:0')
    e(f's_mov_b32 s{IT}, 0\ns_waitcnt lgkmcnt(0)\ns_nop 7\ns_nop 7\ns_nop 1')
    e.lab('.Lat_loop')
    def E(X,a,b):
        for r in range(a,b): e(f'v_exp_f32 v{X+r}, v{X+r}')
    def C(X,p):
        for q in range(4): e(f'v_cvt_pk_bf16_f32 v{PB+4*p+q}, v{X+8*p+2*q}, v{X+8*p+2*q+1}')
    def PV(q,m,p): e(f'v_mfma_f32_32x32x16_bf16 {v(OA+16*q,16)}, {v(VF+4*m,4)}, {v(PB+4*p,4)}, {v(OA+16*q,16)}')
    for tau in range(8):
        X,Y=(SX_,SY_) if tau%2==0 else (SY_,SX_)
        e(f'v_mfma_f32_32x32x16_bf16 {v(Y,16)}, {v(KF,4)}, {v(Q0,4)}, {v(NM,16)}')
        E(X,0,4)
        PV(1,1,3)
        e('s_waitcnt lgkmcnt(0)')
        e(f'ds_read_b128 {v(VF+4,4)}, v{AV} offset:{tau*128+64}')
        E(X,4,8)
        e(f'v_mfma_f32_32x32x16_bf16 {v(Y+16,16)}, {v(KF,4)}, {v(Q1,4)}, {v(NM+16,16)}')
        t2=tau+2; off=((t2&7)>>1)*256+(9216 if t2>=8 else 0); ar=AE if t2%2==0 else AO
        if tau==6:
            e(f's_cmp_lg_u32 s{IT}, 0\ns_cbranch_scc1 .Lat_nobar\ns_waitcnt vmcnt(0)\ns_barrier')
            e.lab('.Lat_nobar')
        e(f'ds_read_b64_tr_b16 {v(KF,2)}, v{ar} offset:{off}\nds_read_b64_tr_b16 {v(KF+2,2)}, v{ar} offset:{off+2048}')
        C(X,0)
        E(X,8,10)
        PV(0,0,0)
        e('s_waitcnt lgkmcnt(2)')
        E(X,10,16)
        e(f'v_mfma_f32_32x32x4_2b_bf16 {v(Y,32)}, {v(KX,2)}, {v(QX,2)}, {v(Y,32)} cbsz:1 abid:{1 if tau%2==0 else 0}')
        if tau%2==0:
            pr=tau//2+1
            e(f'ds_read_b64_tr_b16 {v(KX,2)}, v{AXr} offset:{pr*256 if pr<4 else 9216}')
        C(X,1)
        E(X,16,22)
        PV(0,1,1)
        if tau==7: e(f'v_add_u32 v{AV}, v{IV}, v{AV}')
        E(X,22,24)
        C(X,2)
        E(X,24,26)
        PV(1,0,2)
        e('s_waitcnt lgkmcnt(0)')
        e(f'ds_read_b128 {v(VF,4)}, v{AV} offset:{((tau+1)&7)*128}')
        E(X,26,32)
        C(X,3)
    e(f'v_add_u32 v{AE}, 9216, v{AE}\nv_add_u32 v{AO}, 9216, v{AO}\nv_add_u32 v{AXr}, 9216, v{AXr}')
    e(f's_add_u32 s{IT}, s{IT}, 1\ns_cmp_lt_u32 s{IT}, 4\ns_cbranch_scc1 .Lat_loop')
    PV(1,1,3)
    e('s_waitcnt lgkmcnt(0)\ns_nop 7\ns_nop 3')
    for q in range(2):
        b=OA+16*q
        e(f'v_max3_f32 v{20+q}, |v{b}|, |v{b+1}|, |v{b+2}|')
        for r in range(3,11,2): e(f'v_max3_f32 v{20+q}, v{20+q}, |v{b+r}|, |v{b+r+1}|')
    e(f'v_add_f32 v22, v{OA+10}, v{OA+26}\nv_max_f32 v20, v20, v21\nv_mov_b32 v21, 0x7e000000')
    for q in range(2):
        for r in range(10): e(f'v_add_f32 v22, v22, v{OA+16*q+r}')
    e('v_cmp_nlt_f32 vcc, v20, v21\nv_cmp_u_f32 s[90:91], v22, v22\ns_nop 1\ns_or_b64 vcc, vcc, s[90:91]\ns_cbranch_vccz .Lat_ok')
    e(f'v_mov_b32 v20, {L_FLAG}\nv_mov_b32 v21, 1\nds_write_b32 v20, v21')
    e.lab('.Lat_ok')
    e('s_waitcnt lgkmcnt(0)\ns_barrier')
    e(f's_mul_i32 s{T}, s{S_WAVE}, 3072\nv_lshlrev_b32 v20, 4, v0\nv_add_u32 v21, s{T}, v20\ns_xor_b32 s{T}, s{S_WAVE}, 4\ns_mul_i32 s{T}, s{T}, 3072\nv_add_u32 v22, s{T}, v20')
    e(f'v_mov_b32 v23, {L_FLAG}\nds_read_b32 v24, v23')
    e(f's_cmp_eq_u32 s{KH}, 0\ns_cbranch_scc1 .Lat_x0')
    for i in range(3): e(f'ds_write_b128 v21, {v(OA+4*i,4)} offset:{1024*i}')
    for r in range(11): e(f'v_mov_b32 v{OA+r}, v{OA+16+r}')
    e('s_branch .Lat_x1')
    e.lab('.Lat_x0')
    for i in range(3): e(f'ds_write_b128 v21, {v(OA+16+4*i,4)} offset:{1024*i}')
    e.lab('.Lat_x1')
    e('s_waitcnt lgkmcnt(0)\nv_readfirstlane_b32 s90, v24\ns_barrier')
    for i in range(3): e(f'ds_read_b128 {v(OA+16+4*i,4)}, v22 offset:{1024*i}')
    e(f's_cmp_eq_u32 s90, 0\ns_cbranch_scc1 .Lat_fin\ns_cmp_lg_u32 s{MODE}, 0\ns_cbranch_scc1 .Lat_fin')
    e(f's_mov_b32 s{MODE}, 1\ns_waitcnt lgkmcnt(0)\ns_barrier\ns_branch .Lat_restart')
    e.lab('.Lat_truemax')
    e(f's_waitcnt vmcnt(0) lgkmcnt(0)\ns_barrier\nv_mov_b32 v{QX+1}, 0\nv_mov_b32 v20, 0xff800000\nv_mov_b32 v21, 0xff800000\ns_mov_b32 s{IT}, 0\nv_xor_b32 v18, 128, v13')
    e.lab('.Lat_tm_loop')
    for tau in range(8):
        ar=13 if tau%2==0 else 18
        e(f'ds_read_b64_tr_b16 {v(KF,2)}, v{ar} offset:{(tau>>1)*256}\nds_read_b64_tr_b16 {v(KF+2,2)}, v{ar} offset:{(tau>>1)*256+2048}\nds_read_b64_tr_b16 {v(KX,2)}, v14 offset:{(tau>>1)*256}')
        e('s_waitcnt lgkmcnt(0)')
        e(f'v_mfma_f32_32x32x16_bf16 {v(SX_,16)}, {v(KF,4)}, {v(Q0,4)}, 0\nv_mfma_f32_32x32x16_bf16 {v(SX_+16,16)}, {v(KF,4)}, {v(Q1,4)}, 0')
        e('s_nop 7\ns_nop 1')
        e(f'v_mfma_f32_32x32x4_2b_bf16 {v(SX_,32)}, {v(KX,2)}, {v(QX,2)}, {v(SX_,32)} cbsz:1 abid:{tau&1}')
        e('s_nop 7\ns_nop 7\ns_nop 3')
        for q in range(2):
            for r in range(0,16,2): e(f'v_max3_f32 v{20+q}, v{20+q}, v{SX_+16*q+r}, v{SX_+16*q+r+1}')
    e(f'v_add_u32 v13, 9216, v13\nv_add_u32 v18, 9216, v18\nv_add_u32 v14, 9216, v14\ns_add_u32 s{IT}, s{IT}, 1\ns_cmp_lt_u32 s{IT}, 8\ns_cbranch_scc1 .Lat_tm_loop')
    e(f'ds_read_b64_tr_b16 {v(KF,2)}, v{AE}\nds_read_b64_tr_b16 {v(KF+2,2)}, v{AE} offset:2048\nds_read_b64_tr_b16 {v(KX,2)}, v{AXr}\nds_read_b128 {v(VF,4)}, v{AV}')
    e('v_mov_b32 v24, 0\ns_branch .Lat_gotmax')
    e.lab('.Lat_fin')
    e(f's_lshl_b32 s{T}, s{QB}, 8\ns_lshl_b32 s{T+1}, s{QQ}, 6\ns_add_u32 s{T}, s{T}, s{T+1}\ns_lshl_b32 s{T+1}, s{KH}, 5\ns_add_u32 s{T}, s{T}, s{T+1}\ns_lshl_b32 s{T}, s{T}, 4')
    e(f'v_and_b32 v20, 31, v0\nv_lshlrev_b32 v20, 4, v20\nv_add_u32 v20, s{T}, v20\nv_lshrrev_b32 v21, 5, v0\nv_lshl_add_u32 v21, v21, 15, v20')
    e(f's_lshl_b32 s{T}, s{HEAD}, 16\ns_add_u32 s{T}, s{T}, {WS_O}')
    e(f's_lshr_b32 s{T+1}, s{HEAD}, 2\ns_lshl_b32 s{T+1}, s{T+1}, 15\ns_and_b32 s{T+2}, s{HEAD}, 3\ns_lshl_b32 s{T+2}, s{T+2}, 2\ns_add_u32 s{T+1}, s{T+1}, s{T+2}\ns_add_u32 s{T+1}, s{T+1}, {WS_O+64*32768}')
    e('s_waitcnt lgkmcnt(0)')
    for r in range(11): e(f'v_add_f32 v{OA+r}, v{OA+r}, v{OA+16+r}')
    e(f'v_mov_b32 v22, v{OA+10}\ns_nop 1\nv_permlane32_swap_b32 v{OA+10}, v22\ns_nop 1\nv_rcp_f32 v22, v{OA+10}\ns_nop 0')
    for r in range(10): e(f'v_mul_f32 v{OA+r}, v{OA+r}, v22')
    for q in range(5): e(f'v_cvt_pk_bf16_f32 v{24+q}, v{OA+2*q}, v{OA+2*q+1}')
    e(f'buffer_store_dwordx4 v[24:27], v21, s[{SRD_WS}:{SRD_WS+3}], s{T} offen')
    e(f's_mov_b64 exec, 0xffffffff\nbuffer_store_dword v28, v20, s[{SRD_WS}:{SRD_WS+3}], s{T+1} offen\ns_mov_b64 exec, -1')

def stepb(e,done):
    T1,I,MIR,HF,T=ST,ST+1,ST+2,ST+3,ST+4
    e(f's_lshl_b32 s{T1}, s{S_XCD}, 2\ns_lshr_b32 s{T}, s{S_SLOT}, 3\ns_add_u32 s{T1}, s{T1}, s{T}\ns_and_b32 s{I}, s{S_SLOT}, 7')
    e(f's_lshr_b32 s{MIR}, s{S_WAVE}, 1\ns_and_b32 s{HF}, s{S_WAVE}, 1\ns_cmp_lt_u32 s{S_WAVE}, 4\ns_cbranch_scc1 .Lsb_go')
    e(f's_cmp_ge_u32 s{S_WAVE}, 6\ns_cbranch_scc1 {done}\ns_cmp_ge_u32 s{I}, 2\ns_cbranch_scc1 {done}\ns_mov_b32 s{MIR}, s{I}\ns_mov_b32 s{I}, 8')
    e.lab('.Lsb_go')
    e(f'v_and_b32 v2, 31, v0\nv_lshrrev_b32 v3, 5, v0\ns_lshl_b32 s{T}, s{HF}, 10\ns_add_u32 s{T}, s{T}, s{T1}\nv_lshlrev_b32 v4, 5, v2\nv_add_u32 v4, s{T}, v4')
    e('v_lshlrev_b32 v5, 12, v4\nv_lshl_add_u32 v5, v3, 4, v5')
    for m in range(4):
        e(f'buffer_load_dwordx4 {v(64+4*m,4)}, v5, s[{SRD_SRE}:{SRD_SRE+3}], 0 offen offset:{32*m}')
        e(f'buffer_load_dwordx4 {v(80+4*m,4)}, v5, s[{SRD_SIM}:{SRD_SIM+3}], 0 offen offset:{32*m}')
    swap23(e,6,2,7,8)
    e(f'v_sub_u32 v7, 32, v6\ns_cmp_eq_u32 s{MIR}, 0\ns_cselect_b64 vcc, -1, 0\nv_cndmask_b32 v6, v7, v6, vcc\ns_lshl_b32 s{T}, s{I}, 5\nv_add_u32 v6, s{T}, v6\nv_lshlrev_b32 v6, 2, v6')
    e(f'v_mul_u32_u24 v7, 5120, v3\nv_add_u32 v6, v6, v7\ns_mul_i32 s{T}, s{T1}, 40960\ns_add_u32 s{T}, s{T}, {WS_G}')
    for c in range(2):
        for m in range(4):
            e(f's_add_u32 s{T+1}, s{T}, {c*1310720+m*8*1280}')
            for q in range(4):
                e(f'buffer_load_dword v{96+16*c+4*m+q}, v6, s[{SRD_WS}:{SRD_WS+3}], s{T+1} offen offset:{q*1280}')
    e(f'v_sub_u32 v7, 2048, v4\nv_and_b32 v7, 2047, v7\nv_cndmask_b32 v7, v7, v4, vcc\nv_mul_u32_u24 v7, 2304, v7\nv_lshl_add_u32 v7, v3, 4, v7')
    e(f's_sub_u32 s{T+1}, 17, s{I}\ns_cmp_eq_u32 s{MIR}, 0\ns_cselect_b32 s{T+1}, s{I}, s{T+1}\ns_lshl_b32 s{T+1}, s{T+1}, 6')
    e('s_waitcnt vmcnt(0)')
    for c in range(2):
        for m in range(4):
            src='0' if (c==0 and m==0) else v(32,16)
            e(f'v_mfma_f32_32x32x16_bf16 {v(32,16)}, {v(96+16*c+4*m,4)}, {v(64+16*c+4*m,4)}, {src}')
    e('s_nop 7\ns_nop 3')
    for q in range(8): e(f'v_cvt_pk_bf16_f32 v{48+q}, v{32+2*q}, v{33+2*q}')
    e(f'buffer_store_dwordx4 v[48:51], v7, s[{SRD_OUT}:{SRD_OUT+3}], s{T+1} offen\nbuffer_store_dwordx4 v[52:55], v7, s[{SRD_OUT}:{SRD_OUT+3}], s{T+1} offen offset:32')

def k2(e):
    END='.Lk2_end'
    prologue(e,END,['ws','sre','sim','out'])
    attention(e)
    stepb(e,END)
    e.lab(END)
    e('s_endpgm')

L_WA=0; L_WN=73728; L_OB=82944
def k3(e):
    END='.Lk3_end'
    prologue(e,END,['ws','out'])
    TB,CB,T=ST,ST+1,ST+2
    e(f's_lshl_b32 s{TB}, s{S_XCD}, 2\ns_lshr_b32 s{T}, s{S_SLOT}, 3\ns_add_u32 s{TB}, s{TB}, s{T}\ns_and_b32 s{CB}, s{S_SLOT}, 7')
    e('v_lshlrev_b32 v2, 4, v0')
    e(f's_lshl_b32 s{T}, s{S_WAVE}, 10\ns_mul_i32 s{T+1}, s{CB}, {WOP_CB}\ns_add_u32 s{T+1}, s{T+1}, s{T}\ns_add_u32 s{T+1}, s{T+1}, {WS_W}')
    for i in range(11):
        if i==10: e(f's_cmp_lg_u32 s{S_WAVE}, 0\ns_cbranch_scc1 .Lk3_a_done')
        e(f's_add_u32 m0, s{T}, {i*8192}\ns_add_u32 s{T+2}, s{T+1}, {i*8192}\nbuffer_load_dwordx4 v2, s[{SRD_WS}:{SRD_WS+3}], s{T+2} offen lds')
    e.lab('.Lk3_a_done')
    e(f's_lshl_b32 s{T+1}, s{S_WAVE}, 15\ns_lshl_b32 s{T+2}, s{TB}, 10\ns_add_u32 s{T+1}, s{T+1}, s{T+2}\ns_add_u32 s{T+1}, s{T+1}, {WS_O}')
    for i in range(9):
        e(f's_add_u32 m0, s{T}, {L_OB+i*8192}\ns_add_u32 s{T+2}, s{T+1}, {i*8*32768}\nbuffer_load_dwordx4 v2, s[{SRD_WS}:{SRD_WS+3}], s{T+2} offen lds')
    e(f's_cmp_ge_u32 s{S_WAVE}, 4\ns_cbranch_scc1 .Lk3_nar')
    e(f's_and_b32 s{T}, s{S_WAVE}, 1\ns_lshr_b32 s{T+1}, s{S_WAVE}, 1\ns_lshl_b32 s{T+2}, s{T}, 10\nv_add_u32 v3, s{T+2}, v2')
    e(f'v_and_b32 v5, 31, v0\nv_lshrrev_b32 v6, 5, v0\nv_lshlrev_b32 v4, 4, v5\nv_lshl_add_u32 v4, v6, 10, v4\ns_lshl_b32 s{T+2}, s{T+1}, 9\ns_add_u32 s{T+2}, s{T+2}, {L_OB}\nv_add_u32 v4, s{T+2}, v4')
    e(f's_lshl_b32 s{T+2}, s{TB}, 6\ns_lshl_b32 s{T+3}, s{T+1}, 5\ns_add_u32 s{T+2}, s{T+2}, s{T+3}\nv_add_u32 v7, s{T+2}, v5\nv_mul_u32_u24 v7, 2304, v7\nv_lshl_add_u32 v7, v6, 4, v7')
    e(f's_lshl_b32 s{T+2}, s{CB}, 7\ns_lshl_b32 s{T+3}, s{T}, 6\ns_add_u32 s{T+2}, s{T+2}, s{T+3}\ns_add_u32 s{T+2}, s{T+2}, 1152')
    e('v_add_u32 v8, 49152, v3\nv_add_u32 v9, 49152, v4')
    NB=6
    def rdm(st):
        b=64+8*(st%NB); a,o=(3,4) if st<24 else (8,9); off=(st-(24 if st>=24 else 0))*2048
        e(f'ds_read_b128 {v(b,4)}, v{a} offset:{off}\nds_read_b128 {v(b+4,4)}, v{o} offset:{off}')
    for stg in range(3):
        e(f's_waitcnt vmcnt({6-3*stg})\ns_barrier')
        for st in range(12*stg,12*stg+4): rdm(st)
        for st in range(12*stg,12*stg+12):
            rem=min(3,12*stg+11-st)
            e(f's_waitcnt lgkmcnt({2*rem})')
            b=64+8*(st%NB)
            e(f'v_mfma_f32_32x32x16_bf16 {v(32,16)}, {v(b,4)}, {v(b+4,4)}, {"0" if st==0 else v(32,16)}')
            if st+4<12*stg+12: rdm(st+4)
    e('s_nop 7\ns_nop 3')
    for q in range(8): e(f'v_cvt_pk_bf16_f32 v{48+q}, v{32+2*q}, v{33+2*q}')
    e(f'buffer_store_dwordx4 v[48:51], v7, s[{SRD_OUT}:{SRD_OUT+3}], s{T+2} offen\nbuffer_store_dwordx4 v[52:55], v7, s[{SRD_OUT}:{SRD_OUT+3}], s{T+2} offen offset:32')
    e(f's_branch {END}')
    e.lab('.Lk3_nar')
    e(f's_sub_u32 s{T}, s{S_WAVE}, 4\nv_and_b32 v5, 15, v0\nv_lshrrev_b32 v6, 4, v0')
    e(f'v_and_b32 v3, 7, v0\nv_lshlrev_b32 v3, 4, v3\nv_lshl_add_u32 v3, v6, 7, v3\nv_add_u32 v3, {L_WN}, v3')
    e(f'v_lshlrev_b32 v4, 4, v5\nv_lshl_add_u32 v4, v6, 10, v4\ns_lshl_b32 s{T+2}, s{T}, 8\ns_add_u32 s{T+2}, s{T+2}, {L_OB}\nv_add_u32 v4, s{T+2}, v4\nv_add_u32 v9, 49152, v4')
    e(f's_lshl_b32 s{T+2}, s{TB}, 6\ns_lshl_b32 s{T+3}, s{T}, 4\ns_add_u32 s{T+2}, s{T+2}, s{T+3}\nv_add_u32 v7, s{T+2}, v5\nv_mul_u32_u24 v7, 2304, v7\nv_lshl_add_u32 v7, v6, 3, v7')
    e(f's_lshl_b32 s{T+2}, s{CB}, 4\ns_add_u32 s{T+2}, s{T+2}, {1152+1024}')
    for stg in range(3):
        e(f's_waitcnt vmcnt({6-3*stg})\ns_barrier')
        for S in range(6*stg,6*stg+6):
            b=64+8*(S%6); o=4 if S<12 else 9; off=(S-(12 if S>=12 else 0))*4096
            e(f'ds_read_b128 {v(b,4)}, v3 offset:{S*512}\nds_read_b128 {v(b+4,4)}, v{o} offset:{off}')
        for S in range(6*stg,6*stg+6):
            b=64+8*(S%6)
            e(f's_waitcnt lgkmcnt({2*(6*stg+5-S)})')
            e(f'v_mfma_f32_16x16x32_bf16 {v(32,4)}, {v(b,4)}, {v(b+4,4)}, {"0" if S==0 else v(32,4)}')
    e('s_nop 7')
    e('v_cvt_pk_bf16_f32 v48, v32, v33\nv_cvt_pk_bf16_f32 v49, v34, v35')
    e(f's_mov_b64 exec, 0xffffffff\nbuffer_store_dwordx2 v[48:49], v7, s[{SRD_OUT}:{SRD_OUT+3}], s{T+2} offen')
    e.lab(END)
    e('s_endpgm')

def kdesc(name,nv):
    return f""".p2align 6
.amdhsa_kernel {name}
  .amdhsa_next_free_vgpr {nv}
  .amdhsa_next_free_sgpr 102
  .amdhsa_accum_offset {nv}
  .amdhsa_group_segment_fixed_size 0
  .amdhsa_kernarg_size 88
  .amdhsa_user_sgpr_count 2
  .amdhsa_user_sgpr_kernarg_segment_ptr 1
  .amdhsa_system_sgpr_workgroup_id_x 1
.end_amdhsa_kernel
"""
def main():
    ks=[('p1_kernel',k1,163840,256),('p2_kernel',k2,163840,256),('p3_kernel',k3,163840,256)]
    out=''
    for n,f,lds,nv in ks: out+=f'; @launch kernel={n} grid=(256,1,1) block=(512,1,1) lds={lds}\n'
    out+='.amdgcn_target "amdgcn-amd-amdhsa--gfx950"\n.text\n'
    for n,f,lds,nv in ks:
        e=Em(); f(e)
        errs=hz.check(e.text())
        for x in errs: print(n,x)
        out+=f'.globl {n}\n.p2align 8\n.type {n},@function\n{n}:\n'+e.text()
    out+='.section .rodata,"a"\n'
    for n,f,lds,nv in ks: out+=kdesc(n,nv)
    open(OUT,'w').write(out)
    print('written',len(out))
main()
```

```python
import sys, math, struct, os
sys.path.insert(0,'gen')
import hz
NAME='concat_heads__spectral_fnet__softmax_full_mha__prompt'
OUT=os.environ.get('OUT','cdna_kernels/'+NAME+'.s')
STAMP=int(os.environ.get('STAMP','0'))
VAR=os.environ.get('VAR','').split(',')
MOFF=float(os.environ.get('MOFF','100'))
SC1='' if 'nosc1ld' in VAR else ' sc1'

WS_QKV=0; WS_G=0x700000; WS_O=0x980000; WS_OL=WS_O+0x200000; WS_W=0xBC0000; WOP_CB=82944
WS_F1=0xD80000; WS_F2=WS_F1+0x8000; WS_F3=WS_F1+0x10000; WS_ST=0xE00000
SPIN=1<<16

def f2u(x): return struct.unpack('<I',struct.pack('<f',x))[0]
QSCALE=f2u(18**-0.5*math.log2(math.e))
class Em:
    def __init__(s): s.l=[]; s.n=0
    def __call__(s,t):
        for x in t.strip('\n').split('\n'):
            x=x.strip()
            if x: s.l.append('  '+x)
    def lab(s,t): s.l.append(t+':')
    def uniq(s,p): s.n+=1; return f'.L{p}_{s.n}'
    def text(s): return '\n'.join(s.l)+'\n'
def v(i,n=1): return f'v{i}' if n==1 else f'v[{i}:{i+n-1}]'
def sq(i): return f's[{i}:{i+3}]'

S_WAVE=3; SRD_WS=4
P_AX,P_SRE,P_SIM,P_HRE,P_HIM,P_BX,P_WQ,P_WO,P_OUT,P_DBG,P_WS=8,10,12,14,16,18,20,22,24,26,28
SRD_BX,SRD_WQ,SRD_AX,SRD_HRE,SRD_HIM,SRD_SRE,SRD_SIM,SRD_WO,SRD_OUT,SRD_DBG=32,36,40,44,48,52,56,60,64,84
S_XCD,S_SLOT=68,69
ST=70
NON=88
RB,CB,UJ,SP=90,91,92,93
TAB={'ws':(SRD_WS,P_WS,0x10000000),'bx':(SRD_BX,P_BX,2359296),'wq':(SRD_WQ,P_WQ,1990656),'ax':(SRD_AX,P_AX,2359296),
     'hre':(SRD_HRE,P_HRE,663552),'him':(SRD_HIM,P_HIM,663552),'sre':(SRD_SRE,P_SRE,8388608),'sim':(SRD_SIM,P_SIM,8388608),
     'wo':(SRD_WO,P_WO,663552),'out':(SRD_OUT,P_OUT,4718592),'dbg':(SRD_DBG,P_DBG,256)}
def srds(e,names):
    for k in names:
        d,p,size=TAB[k]
        e(f's_mov_b32 s{d}, s{p}\ns_mov_b32 s{d+1}, s{p+1}\ns_mov_b32 s{d+2}, {size}\ns_mov_b32 s{d+3}, 0x20000')
NST=11
def stamp(e,i):
    if not STAMP: return
    r=100 if i==0 else 8+2*(i-1)
    e(f's_mem{"real" if STAMP==1 else ""}time s[{r}:{r+1}]')
def stamp_clear(e):
    if STAMP:
        for i in range(1,NST): e(f's_mov_b32 s{8+2*(i-1)}, 0')
def stamp_out(e):
    if not STAMP: return
    stamp(e,10)
    e('s_mov_b64 exec, 1\ns_waitcnt lgkmcnt(0)\nv_mov_b32 v2, s100')
    for i in range(1,NST): e(f'v_mov_b32 v{2+i}, s{8+2*(i-1)}')
    e(f's_lshl_b32 s94, s2, 3\ns_add_u32 s94, s94, s{S_WAVE}\ns_lshl_b32 s94, s94, 6\ns_add_u32 s94, s94, {WS_ST}\nv_mov_b32 v1, 0')
    for i in range(3): e(f'buffer_store_dwordx4 v[{2+4*i}:{5+4*i}], v1, {sq(SRD_WS)}, s94 offen offset:{16*i}')

def swap23(e,dst,src,t1,t2):
    e(f'v_and_b32 v{t1}, 4, v{src}\nv_lshlrev_b32 v{t1}, 1, v{t1}\nv_and_b32 v{t2}, 8, v{src}\nv_lshrrev_b32 v{t2}, 1, v{t2}')
    e(f'v_and_b32 v{dst}, 0x13, v{src}\nv_or3_b32 v{dst}, v{dst}, v{t1}, v{t2}')

L_X=131072; L_GS=147456; L_CTL=162816
C_CNTF=L_CTL; C_CNTP=L_CTL+4; C_NON=L_CTL+8
L_K=0; L_V=73728; L_Q=149760; L_ONE=158976; L_FLAG=160000; L_ZERO=160256; L_XCH=98304
L_WA=0; L_WN=73728; L_OB=82944; L_OL=148480
HS=[L_X,32768,49152,65536,81920,98304,114688,0,16384]

def prepack(e):
    done=e.uniq('pp_done'); nar=e.uniq('pp_nar'); go=e.uniq('pp_go')
    T,R,STEP,H,KB,D=ST,ST+1,ST+2,ST+3,ST+4,ST+5
    e(f's_lshl_b32 s{T}, s{S_WAVE}, 8\ns_add_u32 s{T}, s{T}, s2\ns_cmp_lt_u32 s{T}, 648\ns_cbranch_scc0 {done}')
    e(f's_cmp_lt_u32 s{T}, 576\ns_cbranch_scc0 {nar}')
    e(f's_lshr_b32 s{R}, s{T}, 3\ns_and_b32 s{D}, s{T}, 7')
    e('v_and_b32 v2, 31, v0')
    swap23(e,3,2,4,5)
    e(f'v_and_b32 v4, 32, v0\nv_add_u32 v3, v3, v4\ns_lshl_b32 s{T}, s{D}, 6\nv_add_u32 v3, s{T}, v3\nv_lshlrev_b32 v3, 1, v3')
    e(f's_mul_i32 s{D}, s{D}, {WOP_CB}\ns_lshr_b32 s{STEP}, s{R}, 1\ns_and_b32 s{H}, s{R}, 1')
    e(f's_lshl_b32 s{T}, s{STEP}, 11\ns_add_u32 s{D}, s{D}, s{T}\ns_lshl_b32 s{T}, s{H}, 9\ns_add_u32 s{D}, s{D}, s{T}')
    e(f'v_lshlrev_b32 v2, 4, v2\nv_lshlrev_b32 v4, 5, v4\nv_add_u32 v2, v2, v4')
    e(f's_branch {go}')
    e.lab(nar)
    e(f's_sub_u32 s{R}, s{T}, 576\ns_lshr_b32 s{STEP}, s{R}, 1\ns_and_b32 s{H}, s{R}, 1')
    e('v_add_u32 v3, 512, v0\nv_lshlrev_b32 v3, 1, v3')
    e(f'v_lshrrev_b32 v2, 3, v0\nv_mul_u32_u24 v2, {WOP_CB}, v2\nv_and_b32 v4, 7, v0\nv_lshlrev_b32 v4, 4, v4\nv_add_u32 v2, v2, v4')
    e(f's_lshl_b32 s{D}, s{R}, 7\ns_add_u32 s{D}, s{D}, 73728')
    e.lab(go)
    e(f's_add_u32 s{D}, s{D}, {WS_W}')
    e(f's_mul_i32 s{KB}, s{STEP}, 18\ns_lshl_b32 s{T}, s{H}, 2\ns_add_u32 s{KB}, s{KB}, s{T}')
    e(f's_sub_u32 s{R}, s{STEP}, 32\ns_lshl_b32 s{R}, s{R}, 3\ns_add_u32 s{R}, s{R}, s{T}\ns_mul_i32 s{R}, s{R}, 18\ns_add_u32 s{R}, s{R}, 16')
    e(f's_cmp_lt_u32 s{STEP}, 32\ns_cselect_b32 s{KB}, s{KB}, s{R}\ns_mul_i32 s{KB}, s{KB}, 1152')
    dm=[0,1,2,3,8,9,10,11]; dl=[0,1,18,19,36,37,54,55]
    for j in range(8):
        if dm[j]==dl[j]: e(f's_add_u32 s{T}, s{KB}, {dm[j]*1152}')
        else: e(f's_mov_b32 s{R}, {dl[j]*1152}\ns_cmp_lt_u32 s{STEP}, 32\ns_cselect_b32 s{T}, {dm[j]*1152}, s{R}\ns_add_u32 s{T}, s{T}, s{KB}')
        e(f'buffer_load_ushort v{16+j}, v3, {sq(SRD_WO)}, s{T} offen')
    e('s_waitcnt vmcnt(0)')
    for j in range(4): e(f'v_lshl_or_b32 v{8+j}, v{17+2*j}, 16, v{16+2*j}')
    e(f'buffer_store_dwordx4 v[8:11], v2, {sq(SRD_WS)}, s{D} offen sc1')
    e.lab(done)

def poll(e,loads,nreg,tag):
    L=e.uniq('poll'); X=e.uniq('polx')
    e(f's_mov_b32 s{ST+13}, 0')
    e.lab(L)
    for l in loads: e(l)
    e('s_waitcnt vmcnt(0)')
    chk(e,nreg)
    e(f's_cbranch_vccz {X}\ns_add_u32 s{ST+13}, s{ST+13}, 1\ns_cmp_lt_u32 s{ST+13}, {SPIN}\ns_cbranch_scc1 {L}')
    e.lab(X)
def chk(e,regs):
    first=True
    for r in regs:
        e(f'v_xor_b32 v{30 if first else 31}, s{NON}, v{r}')
        if not first: e('v_or_b32 v30, v30, v31')
        e(f'v_xor_b32 v31, s{NON+1}, v{r+1}\nv_or_b32 v30, v30, v31')
        first=False
    e('v_cmp_ne_u32 vcc, 0, v30')

def phase1_compute(e):
    srds(e,['ws','wo','dbg','sre','sim','out'])
    stamp_clear(e)
    e(f's_cmp_lg_u32 s{S_WAVE}, 0\ns_cbranch_scc1 .Lc_noinit')
    e(f'v_mov_b32 v2, 0\nv_mov_b32 v3, 0\nv_mov_b32 v4, {L_CTL}\nds_write_b64 v4, v[2:3]\nv_mov_b32 v4, {L_FLAG}\nds_write_b32 v4, v2')
    e(f's_cmp_lg_u32 s2, 0\ns_cbranch_scc1 .Lc_noinit')
    e(f's_memrealtime s[{NON}:{NON+1}]\ns_waitcnt lgkmcnt(0)\ns_or_b32 s{NON+1}, s{NON+1}, 0x40000000\nv_mov_b32 v4, s{NON}\nv_mov_b32 v5, s{NON+1}')
    e(f's_mov_b64 exec, 1\nbuffer_store_dwordx2 v[4:5], v2, {sq(SRD_DBG)}, 0 offen sc1\ns_mov_b64 exec, -1')
    e.lab('.Lc_noinit')
    e(f's_cmp_lg_u32 s{S_WAVE}, 3\ns_cbranch_scc1 .Lc_noones')
    e('v_mov_b32 v8, 0x3f803f80\nv_mov_b32 v9, v8\nv_mov_b32 v10, v8\nv_mov_b32 v11, v8\nv_lshlrev_b32 v5, 4, v0\nv_mov_b32 v12, 0\nv_mov_b32 v13, 0\nv_mov_b32 v14, 0\nv_mov_b32 v15, 0')
    e(f'v_add_u32 v5, {L_ONE}, v5\nds_write_b128 v5, v[8:11]\nds_write_b128 v5, v[12:15] offset:{L_ZERO-L_ONE}')
    e.lab('.Lc_noones')
    prepack(e)
    e(f's_cmp_lg_u32 s{SP}, 0\ns_cbranch_scc1 .Lc_spare')
    ACC=64; FA=[16,32]; AA=8; BA=12
    WR,WC=ST,ST+1
    e(f's_and_b32 s{WR}, s{S_WAVE}, 1\ns_lshr_b32 s{WC}, s{S_WAVE}, 1')
    e('v_and_b32 v2, 31, v0')
    swap23(e,3,2,4,5)
    e(f'v_lshrrev_b32 v4, 1, v3\nv_and_b32 v4, 7, v4\nv_lshrrev_b32 v5, 5, v0\nv_xor_b32 v4, v4, v5')
    e(f's_lshl_b32 s{ST+2}, s{WR}, 13\nv_lshlrev_b32 v3, 7, v3\nv_add_u32 v3, s{ST+2}, v3')
    for st in range(4): e(f'v_xor_b32 v6, {2*st}, v4\nv_lshl_add_u32 v{AA+st}, v6, 4, v3')
    e('v_and_b32 v3, 15, v0\nv_lshrrev_b32 v4, 2, v3')
    e('v_lshrrev_b32 v5, 5, v0\nv_lshl_add_u32 v5, v5, 3, v4\nv_lshlrev_b32 v5, 8, v5')
    e('v_and_b32 v6, 3, v0\nv_lshlrev_b32 v6, 3, v6\nv_and_b32 v7, 16, v0\nv_lshl_add_u32 v6, v7, 1, v6\nv_add_u32 v5, v5, v6')
    e('v_add_u32 v5, 16384, v5')
    e(f's_lshl_b32 s{ST+2}, s{WC}, 1')
    for b in range(2): e(f's_add_u32 s{ST+3}, s{ST+2}, {b}\nv_xor_b32 v6, s{ST+3}, v4\nv_lshl_add_u32 v{BA+b}, v6, 6, v5')
    CBASE=ST+5
    e(f's_lshl_b32 s{ST+2}, s{CB}, 7\ns_lshl_b32 s{ST+3}, s{WC}, 6\ns_add_u32 s{CBASE}, s{ST+2}, s{ST+3}')
    e(f'v_add_u32 v3, s{CBASE}, v2\nv_lshrrev_b32 v4, 1, v3\nv_lshlrev_b32 v4, 13, v4\nv_and_b32 v3, 1, v3\nv_lshl_add_u32 v4, v3, 5, v4')
    e(f'v_lshrrev_b32 v5, 5, v0\nv_lshl_add_u32 v4, v5, 4, v4')
    e(f's_lshl_b32 s{ST+2}, s{RB}, 9\ns_lshl_b32 s{ST+3}, s{WR}, 8\ns_add_u32 s{ST+2}, s{ST+2}, s{ST+3}\nv_add_u32 v14, s{ST+2}, v4')
    for r in range(64): e(f'v_mov_b32 v{ACC+r}, 0')
    def rd(st,buf,k):
        f=FA[buf]
        if k==0: return f'ds_read_b128 {v(f,4)}, v{AA+st}'
        if k==5: return f'ds_read_b128 {v(f+4,4)}, v{AA+st} offset:4096'
        b=(k-1)//2; u=(k-1)%2
        return f'ds_read_b64_tr_b16 {v(f+8+4*b+2*u,2)}, v{BA+b} offset:{st*4096+u*1024}'
    def mf(buf,a,b):
        f=FA[buf]; c=ACC+16*(2*a+b)
        return f'v_mfma_f32_32x32x16_bf16 {v(c,16)}, {v(f+4*a,4)}, {v(f+8+4*b,4)}, {v(c,16)}'
    CNT,DL=ST+2,ST+4
    e(f's_mov_b32 s{CNT}, 0\ns_waitcnt lgkmcnt(0)\ns_barrier')
    stamp(e,1)
    for k in range(6): e(rd(0,0,k))
    e.lab('.Lc_loop')
    def group(buf,nst,split,waits=True):
        sp=[range(0,3),range(3,5),range(5,6)] if split==0 else [range(0,3),range(3,6),range(0)]
        w=[3,4,5 if split==0 else 6]
        for i,(a,b) in enumerate([(0,0),(0,1),(1,0),(1,1)]):
            if i<3 and waits: e(f's_waitcnt lgkmcnt({w[i]})')
            e(mf(buf,a,b))
            if i<3:
                for k in sp[i]: e(rd(nst,1-buf,k))
            if split==1 and i==2:
                e(f's_add_u32 s{CNT}, s{CNT}, 1\ns_and_b32 s{DL}, s{CNT}, 3\ns_cselect_b32 s{DL}, 1, -3\ns_lshl_b32 s{DL}, s{DL}, 15')
                for q in range(6): e(f'v_add_u32 v{AA+q}, s{DL}, v{AA+q}')
    group(0,1,0); group(1,2,0); group(0,3,1)
    e('s_waitcnt lgkmcnt(0)\ns_barrier')
    group(1,0,0,waits=False)
    e(f's_cmp_lt_u32 s{CNT}, 9\ns_cbranch_scc1 .Lc_loop')
    stamp(e,2)
    e(f'v_mov_b32 v2, 0\nbuffer_load_dwordx2 v[4:5], v2, {sq(SRD_DBG)}, 0 offen sc1')
    e(f's_cmp_ge_u32 s{CBASE}, 1728\ns_cbranch_scc1 .Lc_epi_done')
    e('s_waitcnt lgkmcnt(0)\ns_nop 7')
    e(f's_cmp_ge_u32 s{CBASE}, 576\ns_cbranch_scc1 .Lc_noscale')
    e(f's_mov_b32 s{ST+6}, {QSCALE}\ns_mov_b32 s{ST+7}, {QSCALE}')
    for r in range(0,64,2): e(f'v_pk_mul_f32 {v(ACC+r,2)}, {v(ACC+r,2)}, s[{ST+6}:{ST+7}]')
    e.lab('.Lc_noscale')
    e(f's_mov_b32 s{ST+6}, 131072')
    t=16
    for a in range(2):
        for b in range(2):
            for hf in range(2):
                c=ACC+16*(2*a+b)+8*hf
                for q in range(4): e(f'v_cvt_pk_bf16_f32 v{t+q}, v{c+2*q}, v{c+2*q+1}')
                so='0' if b==0 else f's{ST+6}'
                e(f'buffer_store_dwordx4 {v(t,4)}, v14, {sq(SRD_WS)}, {so} offen offset:{a*128+hf*64} sc1')
                t+=4
    e.lab('.Lc_epi_done')
    stamp(e,3)
    e('s_branch .Lc_pub')
    e.lab('.Lc_spare')
    e(f's_waitcnt lgkmcnt(0)\ns_barrier\nv_mov_b32 v2, 0\nbuffer_load_dwordx2 v[4:5], v2, {sq(SRD_DBG)}, 0 offen sc1')
    e.lab('.Lc_pub')
    HD,T=ST,ST+1
    e(f's_lshl_b32 s{HD}, s{S_XCD}, 2\ns_lshr_b32 s{T}, s{S_SLOT}, 3\ns_add_u32 s{HD}, s{HD}, s{T}\ns_mul_i32 s{HD}, s{HD}, 18')
    e(f'v_bfe_u32 v6, v0, 4, 1\nv_mul_u32_u24 v6, 17, v6\nv_add_u32 v6, s{HD}, v6')
    e(f'v_lshrrev_b32 v7, 7, v6\nv_lshrrev_b32 v8, 5, v0\nv_add_u32 v8, 1, v8\nv_mul_u32_u24 v8, 576, v8\nv_add_u32 v6, v6, v8\nv_lshrrev_b32 v6, 7, v6')
    e(f'v_and_b32 v8, 15, v0\nv_lshl_add_u32 v6, v6, 4, v8\nv_lshlrev_b32 v6, 7, v6')
    e(f's_and_b32 s{T}, s{S_SLOT}, 7\ns_lshl_b32 s{T}, s{T}, 1\nv_and_b32 v8, 1, v0\nv_add_u32 v8, s{T}, v8\nv_lshl_add_u32 v7, v7, 4, v8\nv_lshlrev_b32 v7, 7, v7')
    e(f's_mov_b32 s{ST+13}, 0')
    e.lab('.Lc_non')
    e(f's_waitcnt vmcnt(0)\nv_readfirstlane_b32 s{NON}, v4\nv_readfirstlane_b32 s{NON+1}, v5\ns_cmp_lg_u32 s{NON+1}, 0\ns_cbranch_scc1 .Lc_non_ok')
    e(f'buffer_load_dwordx2 v[4:5], v2, {sq(SRD_DBG)}, 0 offen sc1\ns_add_u32 s{ST+13}, s{ST+13}, 1\ns_cmp_lt_u32 s{ST+13}, {SPIN}\ns_cbranch_scc1 .Lc_non')
    e.lab('.Lc_non_ok')
    stamp(e,4)
    e(f's_cmp_lg_u32 s{SP}, 0\ns_cbranch_scc1 .Lc_noflag')
    e(f's_mov_b64 exec, 1\nv_mov_b32 v8, {C_CNTP}\nv_mov_b32 v9, 1\nds_add_rtn_u32 v9, v8, v9\ns_lshl_b32 s{T}, s{CB}, 4\ns_add_u32 s{T}, s{T}, s{RB}\ns_lshl_b32 s{T}, s{T}, 7\ns_add_u32 s{T}, s{T}, {WS_F1}')
    e(f's_waitcnt lgkmcnt(0)\nv_readfirstlane_b32 s{T+1}, v9\ns_cmp_lg_u32 s{T+1}, 3\ns_cbranch_scc1 .Lc_noflag1')
    e(f'buffer_store_dwordx2 v[4:5], v2, {sq(SRD_WS)}, s{T} offen sc1')
    e.lab('.Lc_noflag1')
    e('s_mov_b64 exec, -1')
    e.lab('.Lc_noflag')
    e(f's_cmp_lg_u32 s{S_WAVE}, 0\ns_cbranch_scc1 .Ljoin')
    e(f'v_mov_b32 v8, {C_NON}\nds_write_b64 v8, v[4:5]\ns_mov_b32 s{T}, {WS_F1}')
    poll(e,[f'buffer_load_dwordx2 v[10:11], v6, {sq(SRD_WS)}, s{T} offen sc1',f'buffer_load_dwordx2 v[12:13], v7, {sq(SRD_WS)}, s{T} offen sc1'],[10,12],'f1')
    e('s_waitcnt lgkmcnt(0)')
    e('s_branch .Ljoin')

class VQ:
    def __init__(s): s.q=[]
    def add(s,tag,n=1): s.q+= [tag]*n
    def wait(s,tag):
        idx=max(i for i,t in enumerate(s.q) if t==tag)
        return len(s.q)-1-idx

XV,WV,FXr,GA=32,36,40,52
LW,MB,MB2,SX,SW,KC,SF,FC,SY=ST,ST+1,ST+2,ST+3,ST+4,ST+5,ST+6,ST+7,ST+8
ROT=94
def loader_pre(e):
    e(f's_sub_u32 s{LW}, s{S_WAVE}, 4\ns_lshl_b32 s{MB}, s{LW}, 12')
    e('v_and_b32 v4, 7, v0\nv_lshrrev_b32 v6, 4, v0\nv_xor_b32 v4, v4, v6\nv_xor_b32 v5, 4, v4\nv_lshlrev_b32 v4, 4, v4\nv_lshlrev_b32 v5, 4, v5')
    e(f's_lshl_b32 s{ST+9}, s{RB}, 7\ns_lshl_b32 s{ST+10}, s{LW}, 5\ns_add_u32 s{ST+9}, s{ST+9}, s{ST+10}')
    e(f'v_lshrrev_b32 v7, 3, v0\nv_add_u32 v7, s{ST+9}, v7\nv_mul_u32_u24 v7, 1152, v7')
    for i in range(4): e(f'v_add3_u32 v{XV+i}, v7, v{4+(i&1)}, s{ST+11}' if False else f'v_add_u32 v{XV+i}, {i*(8*1152-1024)}, v7\nv_add_u32 v{XV+i}, v{XV+i}, v{4+(i&1)}')
    e(f'v_lshlrev_b32 v7, 2, v6\nv_and_b32 v8, 15, v0\nv_xor_b32 v7, v7, v8\nv_lshlrev_b32 v7, 4, v7')
    e(f's_lshl_b32 s{ST+9}, s{LW}, 4\nv_add_u32 v6, s{ST+9}, v6\nv_mul_u32_u24 v6, 3456, v6\nv_add_u32 v6, v6, v7\ns_lshl_b32 s{ST+9}, s{CB}, 8\nv_add_u32 v6, s{ST+9}, v6')
    for i in range(4): e(f'v_add_u32 v{WV+i}, {i*(4*3456-1024)}, v6')
    e(f's_mov_b32 s{KC}, s{ROT}\ns_mov_b32 s{FC}, s{ROT}\ns_lshr_b32 s{MB2}, s{MB}, 1\ns_mov_b32 s{SY}, 0')
def issue_chunk(e,slot):
    e(f's_lshl_b32 s{SX}, s{KC}, 7\ns_add_u32 m0, s{MB}, {slot*32768}\ns_mul_i32 s{SW}, s{KC}, 221184')
    for i in range(4): e(f'buffer_load_dwordx4 v{XV+i}, {sq(SRD_BX)}, s{SX} offen offset:{i*1024} lds')
    e(f's_add_u32 s{KC}, s{KC}, 1\ns_add_u32 m0, s{MB}, {slot*32768+16384}\ns_cmp_eq_u32 s{KC}, 9')
    for i in range(4): e(f'buffer_load_dwordx4 v{WV+i}, {sq(SRD_WQ)}, s{SW} offen offset:{i*1024} lds')
    e(f's_cselect_b32 s{KC}, 0, s{KC}')
def f_addr(e,u):
    PP,ET,T,T2=ST+9,ST+10,ST+11,ST+12
    F=FXr+4*u
    e(f's_add_u32 s{ET}, s{UJ}, {u}\ns_and_b32 s{PP}, s{ET}, 3\ns_lshl_b32 s{T}, s{S_XCD}, 2\ns_add_u32 s{PP}, s{PP}, s{T}\ns_lshr_b32 s{ET}, s{ET}, 2')
    e('v_lshrrev_b32 v6, 3, v0\nv_lshrrev_b32 v7, 2, v6\nv_and_b32 v8, 3, v6\nv_lshl_add_u32 v8, v7, 3, v8')
    e(f's_and_b32 s{T}, s{LW}, 1\ns_lshl_b32 s{T}, s{T}, 8\ns_lshr_b32 s{T2}, s{LW}, 1\ns_add_u32 s{T}, s{T}, s{T2}\ns_lshl_b32 s{T2}, s{PP}, 1\ns_add_u32 s{T}, s{T}, s{T2}')
    e(f'v_lshlrev_b32 v8, 6, v8\nv_add_u32 v8, s{T}, v8\nv_mul_u32_u24 v8, 1152, v8')
    e(f'v_add_u32 v{F}, v8, v4\nv_add_u32 v{F+1}, {16*64*1152-1024}, v8\nv_add_u32 v{F+1}, v{F+1}, v5')
    e(f's_lshl_b32 s{T}, s{ET}, 5\ns_lshl_b32 s{T2}, s{LW}, 3\ns_add_u32 s{T}, s{T}, s{T2}')
    e(f'v_add_u32 v8, s{T}, v6\nv_mul_u32_u24 v8, 1152, v8\nv_add_u32 v{F+2}, v8, v4\nv_add_u32 v{F+3}, v8, v5')
    e(f's_lshl_b32 s{T}, s{LW}, 4\nv_add_u32 v8, s{T}, v6\nv_mul_u32_u24 v8, 40960, v8\nv_and_b32 v7, 7, v0\nv_lshl_add_u32 v8, v7, 4, v8')
    e(f's_mul_i32 s{T}, s{PP}, 1280\ns_lshl_b32 s{T2}, s{ET}, 7\ns_add_u32 s{T}, s{T}, s{T2}\ns_add_u32 s{T}, s{T}, {WS_G}\nv_add_u32 v{GA+u}, s{T}, v8')
def issue_f(e,u,f):
    F=FXr+4*u
    e(f's_lshl_b32 s{SF}, s{FC}, 7\ns_add_u32 m0, s{MB2}, {HS[f]}\ns_add_u32 s{FC}, s{FC}, 1')
    e(f'buffer_load_dwordx4 v{F}, {sq(SRD_AX)}, s{SF} offen lds\nbuffer_load_dwordx4 v{F+1}, {sq(SRD_AX)}, s{SF} offen offset:1024 lds')
    e(f's_add_u32 m0, s{MB2}, {HS[f]+8192}\ns_cmp_eq_u32 s{FC}, 9\nbuffer_load_dwordx4 v{F+2}, {sq(SRD_HRE)}, s{SF} offen lds')
    e(f's_cselect_b32 s{FC}, 0, s{FC}\ns_add_u32 m0, s{MB2}, {HS[f]+9216}\ns_nop 0\nbuffer_load_dwordx4 v{F+3}, {sq(SRD_HIM)}, s{SF} offen lds')
def fsync(e,pre):
    L=e.uniq('fs')
    e(pre)
    e(f's_mov_b64 exec, 1\nds_add_u32 v56, v57\ns_mov_b64 exec, -1\ns_add_u32 s{SY}, s{SY}, 4')
    e.lab(L)
    e(f'ds_read_b32 v58, v56\ns_waitcnt lgkmcnt(0)\nv_readfirstlane_b32 s{ST+9}, v58\ns_cmp_lt_u32 s{ST+9}, s{SY}\ns_cbranch_scc1 {L}')
FAC=64; FR=[96,116]; RA=60
def f_setup(e):
    e('v_and_b32 v6, 15, v0\nv_lshrrev_b32 v7, 1, v6\nv_lshrrev_b32 v8, 4, v0\nv_xor_b32 v7, v7, v8\nv_lshlrev_b32 v6, 7, v6\nv_lshl_add_u32 v60, v7, 4, v6\nv_xor_b32 v61, 64, v60')
    e(f'v_add_u32 v62, s{MB2}, v60\nv_add_u32 v63, s{MB2}, v61\nv_add_u32 v62, 8192, v62\nv_add_u32 v63, 8192, v63')
    e(f'v_mov_b32 v56, {C_CNTF}\nv_mov_b32 v57, 1')
    e('v_bfe_u32 v6, v0, 3, 1\nv_mul_u32_u24 v55, 0x8000, v6\nv_lshl_or_b32 v55, v55, 16, v55')
    e(f'v_lshlrev_b32 v6, 12, v6\nv_lshl_add_u32 v6, v8, 9, v6\nv_and_b32 v7, 7, v0\nv_lshl_add_u32 v6, v7, 2, v6\ns_lshl_b32 s{ST+9}, s{LW}, 5\ns_add_u32 s{ST+9}, s{ST+9}, {L_GS}\nv_add_u32 v136, s{ST+9}, v6')
    e(f's_add_u32 s{ST+9}, s{MB2}, {L_GS}\nv_lshlrev_b32 v6, 4, v0\nv_add_u32 v59, s{ST+9}, v6')
def f_compute(e,fl,first):
    steps=[(f,st) for f in fl for st in range(2)]
    def rdf(i):
        f,st=steps[i]; fr=FR[i&1]
        if st==0:
            for q in range(4): e(f'v_add_u32 v{140+q}, {HS[f]}, v{RA+q}')
        e(f'ds_read_b128 {v(fr+16,4)}, v{142+st}')
        for t in range(4): e(f'ds_read_b128 {v(fr+4*t,4)}, v{140+st} offset:{t*2048}')
    rdf(0)
    for i in range(len(steps)):
        if i+1<len(steps): rdf(i+1); e('s_waitcnt lgkmcnt(5)')
        else: e('s_waitcnt lgkmcnt(0)')
        fr=FR[i&1]
        for t in range(4): e(f'v_mfma_f32_16x16x32_bf16 {v(FAC+4*t,4)}, {v(fr+4*t,4)}, {v(fr+16,4)}, {"0" if (first and i==0) else v(FAC+4*t,4)}')
def f_tail(e,u):
    DP=80; DN=88; RR=96; II=112
    e('s_nop 6')
    for s2 in range(2):
        for q in range(4):
            c=FAC+8*s2+2*q
            e(f'v_cvt_pk_bf16_f32 v{DP+4*s2+q}, v{c}, v{c+1}')
    for q in range(8): e(f'v_xor_b32 v{DN+q}, v55, v{DP+q}')
    e('s_nop 1')
    for s2 in range(2):
        for th in range(2):
            e(f'v_mfma_f32_16x16x32_bf16 {v(RR+8*s2+4*th,4)}, {v(16+4*th,4)}, {v(DN+4*s2,4)}, 0')
            e(f'v_mfma_f32_16x16x32_bf16 {v(II+8*s2+4*th,4)}, {v(24+4*th,4)}, {v(DP+4*s2,4)}, 0')
    e('s_nop 7')
    for q in range(16): e(f'v_subrev_f32_dpp v{RR+q}, v{II+q}, v{RR+q} row_ror:8 row_mask:0xf bank_mask:0xf')
    for q in range(8):
        e(f'v_cvt_pk_bf16_f32 v{DP+q}, v{RR+q}, v{RR+8+q}')
        th,r=q//4,q%4
        e(f'ds_write_b32 v136, v{DP+q} offset:{(16*th+r)*128}')
    fsync(e,'s_waitcnt lgkmcnt(0)')
    e(f'ds_read_b128 v[80:83], v59\nds_read_b128 v[84:87], v59 offset:1024\ns_mov_b32 s{SF}, {8*40960}\ns_waitcnt lgkmcnt(1)')
    e(f'buffer_store_dwordx4 v[80:83], v{GA+u}, {sq(SRD_WS)}, 0 offen sc1\ns_waitcnt lgkmcnt(0)\nbuffer_store_dwordx4 v[84:87], v{GA+u}, {sq(SRD_WS)}, s{SF} offen sc1')
def dft_loads(e):
    e('v_and_b32 v2, 15, v0\nv_lshlrev_b32 v2, 18, v2\nv_lshrrev_b32 v3, 4, v0\nv_lshl_add_u32 v2, v3, 4, v2')
    e(f's_mov_b32 s{ST+9}, 4194304')
    e(f'buffer_load_dwordx4 v[16:19], v2, {sq(SRD_SRE)}, 0 offen\nbuffer_load_dwordx4 v[20:23], v2, {sq(SRD_SRE)}, s{ST+9} offen')
    e(f'buffer_load_dwordx4 v[24:27], v2, {sq(SRD_SIM)}, 0 offen\nbuffer_load_dwordx4 v[28:31], v2, {sq(SRD_SIM)}, s{ST+9} offen')
PAIRS=[[0,1],[2,3],[4,5],[6,7],[8]]
def phase1_loader(e):
    e(f's_cmp_lg_u32 s{SP}, 0\ns_cbranch_scc1 .Ll_spare')
    srds(e,['bx','wq'])
    q=VQ()
    issue_chunk(e,0); q.add('c0',8)
    issue_chunk(e,1); q.add('c1',8)
    srds(e,['ws','ax','hre','him','sre','sim','out','dbg'])
    stamp_clear(e)
    stamp(e,1)
    f_addr(e,0); f_setup(e)
    for c in range(9):
        e(f's_waitcnt vmcnt({q.wait(f"c{c}")})\ns_barrier')
        if c+2<9: issue_chunk(e,(c+2)%4); q.add(f'c{c+2}',8)
        if c==6: dft_loads(e); q.add('d',4)
        if c>=7:
            for f in PAIRS[c-7]: issue_f(e,0,f); q.add(f'f{f}',4)
    e('s_barrier')
    stamp(e,2)
    for k in range(5):
        if k+2<5:
            for f in PAIRS[k+2]: issue_f(e,0,f); q.add(f'f{f}',4)
        fsync(e,f's_waitcnt vmcnt({q.wait(f"f{PAIRS[k][-1]}")})')
        f_compute(e,PAIRS[k],k==0)
    stamp(e,3)
    f_tail(e,0)
    e('s_branch .Ljoin')
    e.lab('.Ll_spare')
    srds(e,['ax','hre','him'])
    q=VQ()
    f_addr(e,0)
    seq=[(u,k) for u in range(3) for k in range(5)]
    def iss(i):
        u,k=seq[i]
        for f in PAIRS[k]: issue_f(e,u,f); q.add(f'{u}f{f}',4)
    iss(0); iss(1)
    srds(e,['ws','sre','sim','out','dbg'])
    stamp_clear(e)
    dft_loads(e); q.add('d',4)
    f_addr(e,1); f_addr(e,2); f_setup(e)
    e('s_barrier')
    for i,(u,k) in enumerate(seq):
        if i+2<len(seq): iss(i+2)
        w=q.wait(f'{u}f{PAIRS[k][-1]}')
        if k==4: w=min(w,q.wait('d'))
        fsync(e,f's_waitcnt vmcnt({w})')
        f_compute(e,PAIRS[k],k==0)
        if k==4: f_tail(e,u); q.add('g',2)
    e('s_branch .Ljoin')

SX_,SY_,NM,OA,PB,KF,KX,VF,Q0,Q1,QX=32,64,96,128,160,176,180,184,192,196,200
AE,AO,AXr,AV,IV=204,205,206,207,208
F2R=210; SEQ=218
HEAD,QB,KH,QQ,MODE,IT,EVM=94,95,96,97,98,99,83
def stepb_ids(e,skip):
    T1,I,MIR,HF,T=ST,ST+1,ST+2,ST+3,ST+4
    go=e.uniq('sb')
    e(f's_mov_b32 s{T1}, s{HEAD}\ns_mov_b32 s{I}, s{QB}')
    e(f's_lshr_b32 s{MIR}, s{S_WAVE}, 1\ns_and_b32 s{HF}, s{S_WAVE}, 1\ns_cmp_lt_u32 s{S_WAVE}, 4\ns_cbranch_scc1 {go}')
    e(f's_cmp_ge_u32 s{S_WAVE}, 6\ns_cbranch_scc1 {skip}\ns_cmp_ge_u32 s{I}, 2\ns_cbranch_scc1 {skip}\ns_mov_b32 s{MIR}, s{I}\ns_mov_b32 s{I}, 8')
    e.lab(go)
def attention(e):
    T=ST
    e(f's_lshl_b32 s{HEAD}, s{S_XCD}, 2\ns_lshr_b32 s{T}, s{S_SLOT}, 3\ns_add_u32 s{HEAD}, s{HEAD}, s{T}\ns_and_b32 s{QB}, s{S_SLOT}, 7')
    e(f's_lshr_b32 s{KH}, s{S_WAVE}, 2\ns_and_b32 s{QQ}, s{S_WAVE}, 3\ns_mov_b32 s{MODE}, 0')
    e('v_lshrrev_b32 v5, 3, v0\nv_lshlrev_b32 v5, 7, v5')
    e('v_and_b32 v6, 2, v0\nv_lshlrev_b32 v6, 5, v6\nv_and_b32 v7, 4, v0\nv_lshl_add_u32 v6, v7, 3, v6\nv_and_b32 v7, 1, v0\nv_lshl_add_u32 v6, v7, 4, v6')
    e('v_add_u32 v3, v5, v6')
    e(f's_and_b32 s{T}, s{S_WAVE}, 1\ns_lshl_b32 s{T}, s{T}, 7\nv_xor_b32 v2, s{T}, v3')
    e('v_and_b32 v6, 4, v0\nv_lshlrev_b32 v6, 4, v6\nv_and_b32 v7, 1, v0\nv_lshl_add_u32 v6, v7, 5, v6\nv_and_b32 v7, 2, v0\nv_lshl_add_u32 v6, v7, 3, v6\nv_add_u32 v4, v5, v6')
    GB,G8,MK,MV,SO=T+1,T+2,T+3,T+4,T+5
    e(f's_mul_i32 s{T}, s{HEAD}, 9\ns_add_u32 s{GB}, s{T}, s{S_WAVE}\ns_lshl_b32 s{GB}, s{GB}, 13\ns_add_u32 s{G8}, s{T}, 8\ns_lshl_b32 s{G8}, s{G8}, 13')
    e(f's_lshl_b32 s{MK}, s{S_WAVE}, 10\ns_mul_i32 s{MV}, s{S_WAVE}, 1056')
    e('s_barrier')
    stamp(e,5)
    e.lab('.Lat_restart')
    blocks=[('q',0),('k',0),('k',4),('v',0),('v',4)]+[(k,tg) for tg in (1,5,2,6,3,7) for k in 'kv']
    for bi,(kind,tg) in enumerate(blocks):
        gofs={'q':0,'k':288*8192,'v':576*8192}[kind]
        ld={'q':L_Q,'k':L_K+tg*9216,'v':L_V+tg*9504}[kind]
        def so(base):
            if kind=='q': e(f's_lshl_b32 s{SO}, s{QB}, 10\ns_add_u32 s{SO}, s{SO}, s{base}')
            else: e(f's_add_u32 s{SO}, s{base}, {gofs+tg*1024}')
        e(f's_add_u32 m0, s{MV if kind=="v" else MK}, {ld}')
        so(GB)
        e(f'buffer_load_dwordx4 v{4 if kind=="v" else 2}, {sq(SRD_WS)}, s{SO} offen{SC1} lds')
        sk=e.uniq('dma')
        e(f's_cmp_lg_u32 s{S_WAVE}, {bi%8}\ns_cbranch_scc1 {sk}')
        e(f's_mov_b32 m0, {ld+8*(1056 if kind=="v" else 1024)}')
        so(G8)
        e(f'buffer_load_dwordx4 v{4 if kind=="v" else 3}, {sq(SRD_WS)}, s{SO} offen{SC1} lds')
        e.lab(sk)
    e(f'v_mov_b32 v5, {C_NON}\nds_read_b64 v[18:19], v5')
    e('v_and_b32 v5, 3, v0')
    e('v_and_b32 v6, 1, v5\nv_lshlrev_b32 v6, 4, v6\nv_and_b32 v7, 2, v5\nv_lshl_add_u32 v6, v7, 2, v6')
    e('v_lshlrev_b32 v7, 3, v5')
    e('v_and_b32 v8, 16, v0\nv_lshlrev_b32 v8, 1, v8\nv_and_b32 v9, 4, v0\nv_lshl_add_u32 v8, v9, 4, v8')
    e('v_add_u32 v6, v6, v8\nv_add_u32 v7, v7, v8')
    e('v_lshrrev_b32 v9, 5, v0\nv_lshlrev_b32 v10, 12, v9\nv_bfe_u32 v11, v0, 3, 1\nv_mul_u32_u24 v12, 1152, v11\nv_add_u32 v10, v10, v12')
    KOFF=T+6
    e(f's_mul_i32 s{KOFF}, s{KH}, {4*9216}')
    e(f'v_add_u32 v13, v10, v6')
    e(f'v_add_u32 v{AE}, s{KOFF}, v13\nv_xor_b32 v{AO}, 128, v{AE}')
    e(f'v_lshlrev_b32 v12, 7, v9\nv_add_u32 v14, v12, v6\nv_add_u32 v14, 8192, v14\nv_add_u32 v{AXr}, s{KOFF}, v14')
    e(f's_lshl_b32 s{T}, s{QQ}, 8\ns_add_u32 s{T}, s{T}, {L_Q}\nv_add_u32 v15, v10, v7\nv_add_u32 v15, s{T}, v15\nv_xor_b32 v16, 128, v15')
    e(f'v_add_u32 v17, v12, v7\nv_add_u32 v17, 8192, v17\nv_add_u32 v17, s{T}, v17')
    e('v_and_b32 v5, 31, v0\nv_lshrrev_b32 v6, 1, v5\nv_mul_u32_u24 v6, 1056, v6\nv_and_b32 v7, 1, v5\nv_lshl_add_u32 v6, v7, 4, v6')
    e(f's_mul_i32 s{T}, s{KH}, {4*9504}\ns_add_u32 s{T}, s{T}, {L_V}\nv_add_u32 v6, s{T}, v6\nv_lshl_add_u32 v6, v9, 5, v6')
    e(f'v_cmp_eq_u32 vcc, 18, v5\nv_mov_b32 v7, {L_ONE}\nv_mov_b32 v8, {L_ZERO}\nv_cndmask_b32 v7, v8, v7, vcc')
    e(f'v_cmp_lt_u32 vcc, 17, v5\nv_mov_b32 v8, 9504\ns_nop 0\nv_cndmask_b32 v{AV}, v6, v7, vcc\nv_cndmask_b32_e64 v{IV}, v8, 0, vcc')
    for r in range(32): e(f'v_mov_b32 v{OA+r}, 0')
    for r in range(4): e(f'v_mov_b32 v{PB+12+r}, 0\nv_mov_b32 v{VF+4+r}, 0')
    e(f's_cmp_eq_u32 s{S_WAVE}, 7\ns_cselect_b32 s{EVM}, 5, 1\nv_lshlrev_b32 v209, 7, v0')
    e(f's_waitcnt lgkmcnt(0)\nv_readfirstlane_b32 s{NON}, v18\nv_readfirstlane_b32 s{NON+1}, v19')
    e('s_waitcnt vmcnt(15)\ns_barrier')
    stamp(e,6)
    e(f'ds_read_b64_tr_b16 {v(Q0,2)}, v15\nds_read_b64_tr_b16 {v(Q0+2,2)}, v15 offset:2048\nds_read_b64_tr_b16 {v(Q1,2)}, v16\nds_read_b64_tr_b16 {v(Q1+2,2)}, v16 offset:2048\nds_read_b64_tr_b16 {v(QX,2)}, v17')
    e(f's_cmp_lg_u32 s{MODE}, 0\ns_cbranch_scc1 .Lat_truemax')
    e(f'ds_read_b64_tr_b16 {v(KF,2)}, v13\nds_read_b64_tr_b16 {v(KF+2,2)}, v13 offset:2048\nds_read_b64_tr_b16 {v(KX,2)}, v14')
    e(f's_cmp_lg_u32 s{S_WAVE}, 4\ns_cbranch_scc1 .Lat_nof2')
    e(f's_lshl_b32 s{T}, s2, 7\ns_add_u32 s{T}, s{T}, {WS_F2}\nv_mov_b32 v5, 0\ns_mov_b64 exec, 1\nbuffer_store_dwordx2 v[18:19], v5, {sq(SRD_WS)}, s{T} offen sc1\ns_mov_b64 exec, -1')
    e.lab('.Lat_nof2')
    e(f's_waitcnt lgkmcnt(0)\nv_mov_b32 v{QX+1}, 0')
    e(f'v_mfma_f32_32x32x16_bf16 {v(SX_,16)}, {v(KF,4)}, {v(Q0,4)}, 0\nv_mfma_f32_32x32x16_bf16 {v(SX_+16,16)}, {v(KF,4)}, {v(Q1,4)}, 0')
    e('s_nop 7\ns_nop 1')
    e(f'v_mfma_f32_32x32x4_2b_bf16 {v(SX_,32)}, {v(KX,2)}, {v(QX,2)}, {v(SX_,32)} cbsz:1 abid:0')
    e(f'ds_read_b64_tr_b16 {v(KF,2)}, v{AE}\nds_read_b64_tr_b16 {v(KF+2,2)}, v{AE} offset:2048\nds_read_b64_tr_b16 {v(KX,2)}, v{AXr}')
    e('s_nop 7\ns_nop 7\ns_nop 0')
    for q in range(2):
        b=SX_+16*q
        e(f'v_max3_f32 v{20+q}, v{b}, v{b+1}, v{b+2}')
        for r in range(3,15,2): e(f'v_max3_f32 v{20+q}, v{20+q}, v{b+r}, v{b+r+1}')
        e(f'v_max_f32 v{20+q}, v{20+q}, v{b+15}')
    e(f'v_mov_b32 v24, {f2u(-MOFF)}')
    e.lab('.Lat_gotmax')
    e('v_mov_b32 v22, v20\nv_mov_b32 v23, v21\ns_nop 1\nv_permlane32_swap_b32 v20, v22\nv_permlane32_swap_b32 v21, v23\ns_nop 1')
    e('v_max_f32 v20, v20, v22\nv_max_f32 v21, v21, v23\nv_sub_f32 v20, v24, v20\nv_sub_f32 v21, v24, v21')
    for r in range(32): e(f'v_mov_b32 v{NM+r}, v{20+r//16}')
    e('s_waitcnt lgkmcnt(0)\ns_nop 0')
    e(f'v_mfma_f32_32x32x16_bf16 {v(SX_,16)}, {v(KF,4)}, {v(Q0,4)}, {v(NM,16)}\nv_mfma_f32_32x32x16_bf16 {v(SX_+16,16)}, {v(KF,4)}, {v(Q1,4)}, {v(NM+16,16)}')
    e(f'ds_read_b64_tr_b16 {v(KF,2)}, v{AO}\nds_read_b64_tr_b16 {v(KF+2,2)}, v{AO} offset:2048')
    e('s_waitcnt vmcnt(13)\ns_barrier\ns_nop 5')
    e(f'v_mfma_f32_32x32x4_2b_bf16 {v(SX_,32)}, {v(KX,2)}, {v(QX,2)}, {v(SX_,32)} cbsz:1 abid:0')
    e(f'ds_read_b128 {v(VF,4)}, v{AV}')
    e(f's_mov_b32 s{IT}, 0\ns_waitcnt lgkmcnt(0)\ns_nop 7\ns_nop 7\ns_nop 0')
    e.lab('.Lat_loop')
    def E(X,a,b):
        for r in range(a,b): e(f'v_exp_f32 v{X+r}, v{X+r}')
    def C(X,p):
        for q in range(4): e(f'v_cvt_pk_bf16_f32 v{PB+4*p+q}, v{X+8*p+2*q}, v{X+8*p+2*q+1}')
    def PV(q,m,p): e(f'v_mfma_f32_32x32x16_bf16 {v(OA+16*q,16)}, {v(VF+4*m,4)}, {v(PB+4*p,4)}, {v(OA+16*q,16)}')
    for tau in range(8):
        X,Y=(SX_,SY_) if tau%2==0 else (SY_,SX_)
        e(f'v_mfma_f32_32x32x16_bf16 {v(Y,16)}, {v(KF,4)}, {v(Q0,4)}, {v(NM,16)}')
        E(X,0,4)
        PV(1,1,3)
        e('s_waitcnt lgkmcnt(0)')
        e(f'ds_read_b128 {v(VF+4,4)}, v{AV} offset:{tau*128+64}')
        E(X,4,8)
        e(f'v_mfma_f32_32x32x16_bf16 {v(Y+16,16)}, {v(KF,4)}, {v(Q1,4)}, {v(NM+16,16)}')
        t2=tau+2; off=((t2&7)>>1)*256+(9216 if t2>=8 else 0); ar=AE if t2%2==0 else AO
        if tau==6:
            e(f's_bitcmp1_b32 s{EVM}, s{IT}\ns_cbranch_scc1 .Lat_event')
            e.lab('.Lat_back')
        e(f'ds_read_b64_tr_b16 {v(KF,2)}, v{ar} offset:{off}\nds_read_b64_tr_b16 {v(KF+2,2)}, v{ar} offset:{off+2048}')
        C(X,0)
        E(X,8,10)
        PV(0,0,0)
        e('s_waitcnt lgkmcnt(2)')
        E(X,10,16)
        e(f'v_mfma_f32_32x32x4_2b_bf16 {v(Y,32)}, {v(KX,2)}, {v(QX,2)}, {v(Y,32)} cbsz:1 abid:{1 if tau%2==0 else 0}')
        if tau%2==0:
            pr=tau//2+1
            e(f'ds_read_b64_tr_b16 {v(KX,2)}, v{AXr} offset:{pr*256 if pr<4 else 9216}')
        C(X,1)
        E(X,16,22)
        PV(0,1,1)
        if tau==7: e(f'v_add_u32 v{AV}, v{IV}, v{AV}')
        E(X,22,24)
        C(X,2)
        E(X,24,26)
        PV(1,0,2)
        e('s_waitcnt lgkmcnt(0)')
        e(f'ds_read_b128 {v(VF,4)}, v{AV} offset:{((tau+1)&7)*128}')
        E(X,26,32)
        C(X,3)
    e(f'v_add_u32 v{AE}, 9216, v{AE}\nv_add_u32 v{AO}, 9216, v{AO}\nv_add_u32 v{AXr}, 9216, v{AXr}')
    e(f's_add_u32 s{IT}, s{IT}, 1\ns_cmp_lt_u32 s{IT}, 4\ns_cbranch_scc1 .Lat_loop')
    PV(1,1,3)
    stamp(e,7)
    e(f's_cmp_lg_u32 s{S_WAVE}, 7\ns_cbranch_scc1 .Lat_f2ok\ns_waitcnt vmcnt(0)')
    chk(e,[F2R+2*i for i in range(4)])
    e('s_cbranch_vccz .Lat_f2ok')
    poll(e,[f'buffer_load_dwordx2 {v(F2R+2*i,2)}, v209, {sq(SRD_WS)}, s{ST+i} offen sc1' for i in range(4)],[F2R+2*i for i in range(4)],'f2')
    e.lab('.Lat_f2ok')
    e('s_waitcnt lgkmcnt(0)\ns_nop 7\ns_nop 1')
    for q in range(2):
        b=OA+16*q
        e(f'v_max3_f32 v{20+q}, |v{b}|, |v{b+1}|, |v{b+2}|')
        for r in range(3,11,2): e(f'v_max3_f32 v{20+q}, v{20+q}, |v{b+r}|, |v{b+r+1}|')
    e(f'v_add_f32 v22, v{OA+10}, v{OA+26}\nv_max_f32 v20, v20, v21\nv_mov_b32 v21, 0x7e000000')
    for r in range(0,10,2): e(f'v_add_f32 v23, v{OA+r}, v{OA+r+1}\nv_add_f32 v24, v{OA+16+r}, v{OA+17+r}\nv_add3_f32 v22, v22, v23, v24' .replace('v_add3_f32 v22, v22, v23, v24','v_add_f32 v22, v22, v23\nv_add_f32 v22, v22, v24'))
    e(f'v_cmp_nlt_f32 vcc, v20, v21\nv_cmp_u_f32 s[{T}:{T+1}], v22, v22\ns_nop 1\ns_or_b64 vcc, vcc, s[{T}:{T+1}]\ns_cbranch_vccz .Lat_ok')
    e(f'v_mov_b32 v20, {L_FLAG}\nv_mov_b32 v21, 1\nds_write_b32 v20, v21')
    e.lab('.Lat_ok')
    e(f's_mul_i32 s{T}, s{S_WAVE}, 3072\nv_lshlrev_b32 v20, 4, v0\nv_add_u32 v20, {L_XCH}, v20\nv_add_u32 v21, s{T}, v20\ns_xor_b32 s{T}, s{S_WAVE}, 4\ns_mul_i32 s{T}, s{T}, 3072\nv_add_u32 v22, s{T}, v20')
    e(f'v_mov_b32 v23, {L_FLAG}\ns_waitcnt lgkmcnt(0)\ns_barrier\nds_read_b32 v24, v23')
    e(f's_cmp_eq_u32 s{KH}, 0\ns_cbranch_scc1 .Lat_x0')
    for i in range(3): e(f'ds_write_b128 v21, {v(OA+4*i,4)} offset:{1024*i}')
    for r in range(11): e(f'v_mov_b32 v{OA+r}, v{OA+16+r}')
    e('s_branch .Lat_x1')
    e.lab('.Lat_x0')
    for i in range(3): e(f'ds_write_b128 v21, {v(OA+16+4*i,4)} offset:{1024*i}')
    e.lab('.Lat_x1')
    e(f's_lshl_b32 s{T}, s{QB}, 8\ns_lshl_b32 s{T+1}, s{QQ}, 6\ns_add_u32 s{T}, s{T}, s{T+1}\ns_lshl_b32 s{T+1}, s{KH}, 5\ns_add_u32 s{T}, s{T}, s{T+1}')
    e(f'v_and_b32 v20, 31, v0\nv_add_u32 v20, s{T}, v20\nv_lshlrev_b32 v21, 4, v20\nv_lshlrev_b32 v20, 2, v20\nv_lshrrev_b32 v23, 5, v0\nv_lshl_add_u32 v21, v23, 15, v21')
    e(f's_lshl_b32 s{T}, s{HEAD}, 16\ns_add_u32 s{T}, s{T}, {WS_O}\ns_lshl_b32 s{T+1}, s{HEAD}, 13\ns_add_u32 s{T+1}, s{T+1}, {WS_OL}')
    e(f's_waitcnt lgkmcnt(0)\nv_readfirstlane_b32 s{T+2}, v24\ns_barrier')
    for i in range(3): e(f'ds_read_b128 {v(OA+16+4*i,4)}, v22 offset:{1024*i}')
    e(f's_cmp_eq_u32 s{T+2}, 0\ns_cbranch_scc1 .Lat_fin\ns_cmp_lg_u32 s{MODE}, 0\ns_cbranch_scc1 .Lat_fin')
    e(f's_mov_b32 s{MODE}, 1\ns_waitcnt lgkmcnt(0)\ns_barrier')
    e(f's_mul_i32 s{T}, s{HEAD}, 9\ns_add_u32 s{GB}, s{T}, s{S_WAVE}\ns_lshl_b32 s{GB}, s{GB}, 13\ns_add_u32 s{G8}, s{T}, 8\ns_lshl_b32 s{G8}, s{G8}, 13')
    e(f's_lshl_b32 s{MK}, s{S_WAVE}, 10\ns_mul_i32 s{MV}, s{S_WAVE}, 1056\ns_branch .Lat_restart')
    e.lab('.Lat_truemax')
    e(f's_waitcnt vmcnt(0) lgkmcnt(0)\ns_barrier\nv_mov_b32 v{QX+1}, 0\nv_mov_b32 v20, 0xff800000\nv_mov_b32 v21, 0xff800000\ns_mov_b32 s{IT}, 0\nv_xor_b32 v18, 128, v13')
    e.lab('.Lat_tm_loop')
    for tau in range(2):
        ar=13 if tau%2==0 else 18
        e(f'ds_read_b64_tr_b16 {v(KF,2)}, v{ar}\nds_read_b64_tr_b16 {v(KF+2,2)}, v{ar} offset:2048\nds_read_b64_tr_b16 {v(KX,2)}, v14')
        e('s_waitcnt lgkmcnt(0)')
        e(f'v_mfma_f32_32x32x16_bf16 {v(SX_,16)}, {v(KF,4)}, {v(Q0,4)}, 0\nv_mfma_f32_32x32x16_bf16 {v(SX_+16,16)}, {v(KF,4)}, {v(Q1,4)}, 0')
        e('s_nop 7\ns_nop 1')
        e(f'v_mfma_f32_32x32x4_2b_bf16 {v(SX_,32)}, {v(KX,2)}, {v(QX,2)}, {v(SX_,32)} cbsz:1 abid:{tau&1}')
        e('s_nop 7\ns_nop 7\ns_nop 3')
        for q in range(2):
            for r in range(0,16,2): e(f'v_max3_f32 v{20+q}, v{20+q}, v{SX_+16*q+r}, v{SX_+16*q+r+1}')
    e(f's_add_u32 s{IT}, s{IT}, 1\ns_and_b32 s{T}, s{IT}, 3\ns_cselect_b32 s{T}, 0, 8192\ns_add_u32 s{T}, s{T}, 256')
    e(f'v_add_u32 v13, s{T}, v13\nv_add_u32 v18, s{T}, v18\nv_add_u32 v14, s{T}, v14\ns_cmp_lt_u32 s{IT}, 32\ns_cbranch_scc1 .Lat_tm_loop')
    e(f'ds_read_b64_tr_b16 {v(KF,2)}, v{AE}\nds_read_b64_tr_b16 {v(KF+2,2)}, v{AE} offset:2048\nds_read_b64_tr_b16 {v(KX,2)}, v{AXr}')
    e('v_mov_b32 v24, 0\ns_branch .Lat_gotmax')
    e.lab('.Lat_event')
    e(f's_cmp_lg_u32 s{IT}, 0\ns_cbranch_scc1 .Lat_ev2\ns_waitcnt vmcnt(0)\ns_barrier')
    stepb_ids(e,'.Lat_back')
    e(f'v_and_b32 v25, 31, v0\nv_lshrrev_b32 v26, 5, v0\ns_lshl_b32 s{ST+4}, s{ST+3}, 10\ns_add_u32 s{ST+4}, s{ST+4}, s{ST}\nv_lshlrev_b32 v25, 5, v25\nv_add_u32 v25, s{ST+4}, v25')
    e('v_lshlrev_b32 v25, 12, v25\nv_lshl_add_u32 v25, v26, 4, v25')
    for m in range(4):
        e(f'buffer_load_dwordx4 {v(SEQ+4*m,4)}, v25, {sq(SRD_SRE)}, 0 offen offset:{32*m}')
        e(f'buffer_load_dwordx4 {v(SEQ+16+4*m,4)}, v25, {sq(SRD_SIM)}, 0 offen offset:{32*m}')
    e('s_branch .Lat_back')
    e.lab('.Lat_ev2')
    for i in range(4): e(f's_mov_b32 s{ST+i}, {WS_F2+i*8192}\nbuffer_load_dwordx2 {v(F2R+2*i,2)}, v209, {sq(SRD_WS)}, s{ST+i} offen sc1')
    e('s_branch .Lat_back')
    e.lab('.Lat_fin')
    e('s_waitcnt lgkmcnt(0)')
    for r in range(11): e(f'v_add_f32 v{OA+r}, v{OA+r}, v{OA+16+r}')
    e(f'v_mov_b32 v22, v{OA+10}\ns_nop 1\nv_permlane32_swap_b32 v{OA+10}, v22\ns_nop 1\nv_rcp_f32 v22, v{OA+10}\ns_nop 0')
    for r in range(10): e(f'v_mul_f32 v{OA+r}, v{OA+r}, v22')
    e(f'v_cvt_pk_bf16_f32 v28, v{OA+8}, v{OA+9}')
    for q in range(4): e(f'v_cvt_pk_bf16_f32 v{24+q}, v{OA+2*q}, v{OA+2*q+1}')
    e(f'buffer_store_dwordx4 v[24:27], v21, {sq(SRD_WS)}, s{T} offen sc1')
    for q in range(1,4): e(f'v_mov_b32_dpp v{28+q}, v28 quad_perm:[{q},{q},{q},{q}] row_mask:0xf bank_mask:0xf')
    e(f's_mov_b64 exec, 0x11111111\nbuffer_store_dwordx4 v[28:31], v20, {sq(SRD_WS)}, s{T+1} offen sc1\ns_mov_b64 exec, -1')

def wop_dma(e):
    T=ST+6
    e(f'v_lshlrev_b32 v2, 4, v0\ns_lshl_b32 s{T}, s{S_WAVE}, 10\ns_mul_i32 s{T+1}, s{QB}, {WOP_CB}\ns_add_u32 s{T+1}, s{T+1}, s{T}\ns_add_u32 s{T+1}, s{T+1}, {WS_W}')
    sk=e.uniq('wa')
    e(f's_cmp_lg_u32 s{S_WAVE}, 6\ns_cbranch_scc1 {sk}')
    e(f's_mov_b32 m0, 81920\ns_add_u32 s{T+2}, s{T+1}, {81920-6*1024}\nbuffer_load_dwordx4 v2, {sq(SRD_WS)}, s{T+2} offen{SC1} lds')
    e.lab(sk)
    for i in range(10):
        e(f's_add_u32 m0, s{T}, {i*8192}\ns_add_u32 s{T+2}, s{T+1}, {i*8192}\nbuffer_load_dwordx4 v2, {sq(SRD_WS)}, s{T+2} offen{SC1} lds')

def tail(e):
    T1,I,MIR,HF,T=ST,ST+1,ST+2,ST+3,ST+4
    stepb_ids(e,'.Lt_notask')
    e('v_and_b32 v2, 31, v0\nv_lshrrev_b32 v3, 5, v0')
    swap23(e,6,2,7,8)
    e(f'v_sub_u32 v7, 32, v6\ns_cmp_eq_u32 s{MIR}, 0\ns_cselect_b64 vcc, -1, 0\nv_cndmask_b32 v6, v7, v6, vcc\ns_lshl_b32 s{T}, s{I}, 5\nv_add_u32 v6, s{T}, v6\nv_lshlrev_b32 v6, 2, v6')
    e(f'v_mul_u32_u24 v7, 5120, v3\nv_add_u32 v6, v6, v7\ns_mul_i32 s{T}, s{T1}, 40960\ns_add_u32 s{T}, s{T}, {WS_G}')
    for c in range(2):
        for m in range(4):
            e(f's_add_u32 s{T+1}, s{T}, {c*1310720+m*8*1280}')
            for q in range(4): e(f'buffer_load_dword v{96+16*c+4*m+q}, v6, {sq(SRD_WS)}, s{T+1} offen offset:{q*1280}{SC1}')
    e(f's_lshl_b32 s{T}, s{HF}, 10\ns_add_u32 s{T}, s{T}, s{T1}\nv_lshlrev_b32 v4, 5, v2\nv_add_u32 v4, s{T}, v4')
    e(f'v_sub_u32 v7, 2048, v4\nv_and_b32 v7, 2047, v7\nv_cndmask_b32 v7, v7, v4, vcc\nv_mul_u32_u24 v7, 2304, v7\nv_lshl_add_u32 v7, v3, 4, v7')
    e(f's_sub_u32 s{T+1}, 17, s{I}\ns_cmp_eq_u32 s{MIR}, 0\ns_cselect_b32 s{T+1}, s{I}, s{T+1}\ns_lshl_b32 s{T+1}, s{T+1}, 6')
    e('s_waitcnt vmcnt(32)\ns_barrier')
    stamp(e,8)
    wop_dma(e)
    e('s_waitcnt vmcnt(10)')
    for c in range(2):
        for m in range(4):
            src='0' if (c==0 and m==0) else v(32,16)
            e(f'v_mfma_f32_32x32x16_bf16 {v(32,16)}, {v(96+16*c+4*m,4)}, {v(SEQ+16*c+4*m,4)}, {src}')
    e('s_nop 7\ns_nop 3')
    for q in range(8): e(f'v_cvt_pk_bf16_f32 v{48+q}, v{32+2*q}, v{33+2*q}')
    e(f'buffer_store_dwordx4 v[48:51], v7, {sq(SRD_OUT)}, s{T+1} offen\nbuffer_store_dwordx4 v[52:55], v7, {sq(SRD_OUT)}, s{T+1} offen offset:32')
    e('s_branch .Lt_join')
    e.lab('.Lt_notask')
    e('s_waitcnt vmcnt(0)\ns_barrier')
    stamp(e,8)
    e(f's_cmp_lg_u32 s{S_WAVE}, 7\ns_cbranch_scc1 .Lt_no7')
    e(f's_lshl_b32 s{T}, s{HEAD}, 3\ns_add_u32 s{T}, s{T}, s{QB}\ns_lshl_b32 s{T}, s{T}, 7\ns_add_u32 s{T}, s{T}, {WS_F3}\nv_mov_b32 v4, s{NON}\nv_mov_b32 v5, s{NON+1}\nv_mov_b32 v3, 0')
    e(f's_mov_b64 exec, 1\nbuffer_store_dwordx2 v[4:5], v3, {sq(SRD_WS)}, s{T} offen sc1\ns_mov_b64 exec, -1')
    e.lab('.Lt_no7')
    wop_dma(e)
    e(f's_cmp_lg_u32 s{S_WAVE}, 7\ns_cbranch_scc1 .Lt_join')
    e(f'v_and_b32 v3, 31, v0\nv_lshlrev_b32 v3, 10, v3\ns_lshr_b32 s{T}, s{HEAD}, 2\ns_lshl_b32 s{T}, s{T}, 7\ns_add_u32 s{T}, s{T}, {WS_F3}')
    poll(e,[f'buffer_load_dwordx2 v[10:11], v3, {sq(SRD_WS)}, s{T} offen sc1'],[10],'f3')
    e.lab('.Lt_join')
    TB,CBq,T=HEAD,QB,ST
    e(f's_lshl_b32 s{T}, s{S_WAVE}, 10\ns_lshl_b32 s{T+1}, s{S_WAVE}, 15\ns_lshl_b32 s{T+2}, s{TB}, 10\ns_add_u32 s{T+1}, s{T+1}, s{T+2}\ns_add_u32 s{T+1}, s{T+1}, {WS_O}')
    e(f'v_lshrrev_b32 v3, 4, v0\nv_lshlrev_b32 v3, 13, v3\nv_and_b32 v4, 15, v0\nv_lshl_add_u32 v3, v4, 4, v3\ns_lshl_b32 s{T+3}, s{S_WAVE}, 15\ns_lshl_b32 s{T+2}, s{TB}, 8\ns_add_u32 s{T+3}, s{T+3}, s{T+2}\ns_add_u32 s{T+3}, s{T+3}, {WS_OL}')
    e('s_barrier')
    stamp(e,9)
    for i in range(8):
        e(f's_add_u32 m0, s{T}, {L_OB+i*8192}\ns_add_u32 s{T+2}, s{T+1}, {i*8*32768}\nbuffer_load_dwordx4 v2, {sq(SRD_WS)}, s{T+2} offen{SC1} lds')
    e(f's_add_u32 m0, s{T}, {L_OL}\ns_nop 0\nbuffer_load_dwordx4 v3, {sq(SRD_WS)}, s{T+3} offen{SC1} lds')
    e(f's_cmp_ge_u32 s{S_WAVE}, 4\ns_cbranch_scc1 .Lp3_nar')
    e(f's_and_b32 s{T}, s{S_WAVE}, 1\ns_lshr_b32 s{T+1}, s{S_WAVE}, 1\ns_lshl_b32 s{T+2}, s{T}, 10\nv_add_u32 v3, s{T+2}, v2')
    e(f'v_and_b32 v5, 31, v0\nv_lshrrev_b32 v6, 5, v0\nv_lshlrev_b32 v4, 4, v5\nv_lshl_add_u32 v4, v6, 10, v4\ns_lshl_b32 s{T+2}, s{T+1}, 9\ns_add_u32 s{T+2}, s{T+2}, {L_OB}\nv_add_u32 v4, s{T+2}, v4')
    e(f's_lshl_b32 s{T+2}, s{T+1}, 7\ns_add_u32 s{T+2}, s{T+2}, {L_OL}\nv_lshlrev_b32 v10, 2, v5\nv_lshl_add_u32 v10, v6, 10, v10\nv_add_u32 v10, s{T+2}, v10')
    e(f's_lshl_b32 s{T+2}, s{TB}, 6\ns_lshl_b32 s{T+3}, s{T+1}, 5\ns_add_u32 s{T+2}, s{T+2}, s{T+3}\nv_add_u32 v7, s{T+2}, v5\nv_mul_u32_u24 v7, 2304, v7\nv_lshl_add_u32 v7, v6, 4, v7')
    e(f's_lshl_b32 s{T+2}, s{CBq}, 7\ns_lshl_b32 s{T+3}, s{T}, 6\ns_add_u32 s{T+2}, s{T+2}, s{T+3}\ns_add_u32 s{T+2}, s{T+2}, 1152')
    e('v_add_u32 v8, 49152, v3\nv_add_u32 v9, 49152, v4')
    NB=6
    def rdm(st):
        b=64+8*(st%NB); a,o=(3,4) if st<24 else (8,9); off=(st-(24 if st>=24 else 0))*2048
        e(f'ds_read_b128 {v(b,4)}, v{a} offset:{off}')
        if st<32: e(f'ds_read_b128 {v(b+4,4)}, v{o} offset:{off}'); return 2
        i=st-32
        e(f'ds_read2st64_b32 {v(b+4,2)}, v10 offset0:{8*i} offset1:{8*i+1}\nds_read2st64_b32 {v(b+6,2)}, v10 offset0:{8*i+2} offset1:{8*i+3}'); return 3
    for stg in range(3):
        e(f's_waitcnt vmcnt({6-3*stg})\ns_barrier')
        cnt={}
        for st in range(12*stg,12*stg+4): cnt[st]=rdm(st)
        for st in range(12*stg,12*stg+12):
            e(f's_waitcnt lgkmcnt({sum(n for k,n in cnt.items() if k>st)})')
            b=64+8*(st%NB)
            e(f'v_mfma_f32_32x32x16_bf16 {v(32,16)}, {v(b,4)}, {v(b+4,4)}, {"0" if st==0 else v(32,16)}')
            if st+4<12*stg+12: cnt[st+4]=rdm(st+4)
    e('s_nop 7\ns_nop 3')
    for q in range(8): e(f'v_cvt_pk_bf16_f32 v{48+q}, v{32+2*q}, v{33+2*q}')
    e(f'buffer_store_dwordx4 v[48:51], v7, {sq(SRD_OUT)}, s{T+2} offen\nbuffer_store_dwordx4 v[52:55], v7, {sq(SRD_OUT)}, s{T+2} offen offset:32')
    e('s_branch .Lend')
    e.lab('.Lp3_nar')
    e(f's_sub_u32 s{T}, s{S_WAVE}, 4\nv_and_b32 v5, 15, v0\nv_lshrrev_b32 v6, 4, v0')
    e(f'v_and_b32 v3, 7, v0\nv_lshlrev_b32 v3, 4, v3\nv_lshl_add_u32 v3, v6, 7, v3\nv_add_u32 v3, {L_WN}, v3')
    e(f'v_lshlrev_b32 v4, 4, v5\nv_lshl_add_u32 v4, v6, 10, v4\ns_lshl_b32 s{T+2}, s{T}, 8\ns_add_u32 s{T+2}, s{T+2}, {L_OB}\nv_add_u32 v4, s{T+2}, v4\nv_add_u32 v9, 49152, v4')
    e(f's_lshl_b32 s{T+2}, s{T}, 6\ns_add_u32 s{T+2}, s{T+2}, {L_OL}\nv_lshlrev_b32 v10, 2, v5\nv_lshl_add_u32 v10, v6, 10, v10\nv_add_u32 v10, s{T+2}, v10')
    e(f's_lshl_b32 s{T+2}, s{TB}, 6\ns_lshl_b32 s{T+3}, s{T}, 4\ns_add_u32 s{T+2}, s{T+2}, s{T+3}\nv_add_u32 v7, s{T+2}, v5\nv_mul_u32_u24 v7, 2304, v7\nv_lshl_add_u32 v7, v6, 3, v7')
    e(f's_lshl_b32 s{T+2}, s{CBq}, 4\ns_add_u32 s{T+2}, s{T+2}, {1152+1024}')
    for stg in range(3):
        e(f's_waitcnt vmcnt({6-3*stg})\ns_barrier')
        cnt={}
        for S in range(6*stg,6*stg+6):
            b=64+8*(S%6); o=4 if S<12 else 9; off=(S-(12 if S>=12 else 0))*4096
            e(f'ds_read_b128 {v(b,4)}, v3 offset:{S*512}')
            if S<16: e(f'ds_read_b128 {v(b+4,4)}, v{o} offset:{off}'); cnt[S]=2
            else:
                i=16*(S-16)
                e(f'ds_read2st64_b32 {v(b+4,2)}, v10 offset0:{i} offset1:{i+1}\nds_read2st64_b32 {v(b+6,2)}, v10 offset0:{i+2} offset1:{i+3}'); cnt[S]=3
        for S in range(6*stg,6*stg+6):
            b=64+8*(S%6)
            e(f's_waitcnt lgkmcnt({sum(n for k,n in cnt.items() if k>S)})')
            e(f'v_mfma_f32_16x16x32_bf16 {v(32,4)}, {v(b,4)}, {v(b+4,4)}, {"0" if S==0 else v(32,4)}')
    e('s_nop 7')
    e('v_cvt_pk_bf16_f32 v48, v32, v33\nv_cvt_pk_bf16_f32 v49, v34, v35')
    e(f's_mov_b64 exec, 0xffffffff\nbuffer_store_dwordx2 v[48:49], v7, {sq(SRD_OUT)}, s{T+2} offen')

def kernel(e):
    e('s_cmp_lt_u32 s2, 256\ns_cbranch_scc0 .Lexit')
    stamp(e,0)
    e('s_load_dwordx16 s[8:23], s[0:1], 0\ns_load_dwordx4 s[24:27], s[0:1], 64\ns_load_dwordx2 s[28:29], s[0:1], 80')
    e('v_lshrrev_b32 v1, 6, v0\nv_and_b32 v0, 63, v0')
    e(f'v_readfirstlane_b32 s{S_WAVE}, v1')
    e(f's_and_b32 s{S_XCD}, s2, 7\ns_lshr_b32 s{S_SLOT}, s2, 3')
    e(f's_and_b32 s{ST}, s{S_XCD}, 3\ns_lshl_b32 s{ST}, s{ST}, 2\ns_and_b32 s{ST+1}, s{S_SLOT}, 3\ns_add_u32 s{RB}, s{ST}, s{ST+1}')
    e(f's_lshr_b32 s{ST}, s{S_XCD}, 2\ns_mul_i32 s{ST}, s{ST}, 7\ns_lshr_b32 s{ST+2}, s{S_SLOT}, 2\ns_add_u32 s{CB}, s{ST}, s{ST+2}')
    e(f's_lshl_b32 s{ST+1}, s{ST+1}, 1\ns_add_u32 s{ROT}, s{ST+1}, s{ST+2}\ns_sub_u32 s{ST}, s{ROT}, 9\ns_cmp_ge_u32 s{ROT}, 9\ns_cselect_b32 s{ROT}, s{ST}, s{ROT}')
    e(f's_sub_u32 s{ST}, s{S_SLOT}, 28\ns_mul_i32 s{ST}, s{ST}, 3\ns_add_u32 s{ST}, s{ST}, 28\ns_cmp_ge_u32 s{S_SLOT}, 28\ns_cselect_b32 s{UJ}, s{ST}, s{S_SLOT}\ns_cselect_b32 s{SP}, 3, 0')
    e(f's_cmp_lt_u32 s{S_WAVE}, 4\ns_cbranch_scc1 .Lcompute')
    loader_pre(e)
    e('s_waitcnt lgkmcnt(0)')
    phase1_loader(e)
    e.lab('.Lcompute')
    e('s_waitcnt lgkmcnt(0)')
    phase1_compute(e)
    e.lab('.Ljoin')
    attention(e)
    tail(e)
    e.lab('.Lend')
    stamp_out(e)
    e.lab('.Lexit')
    e('s_endpgm')

def main():
    n=NAME+'_kernel'
    e=Em(); kernel(e)
    for x in hz.check(e.text()): print(x)
    out='; @launch grid=(256,1,1) block=(512,1,1) lds=163840\n'
    out+='.amdgcn_target "amdgcn-amd-amdhsa--gfx950"\n.text\n'
    out+=f'.globl {n}\n.p2align 8\n.type {n},@function\n{n}:\n'+e.text()
    out+=f""".section .rodata,"a"
.p2align 6
.amdhsa_kernel {n}
  .amdhsa_next_free_vgpr 256
  .amdhsa_next_free_sgpr 102
  .amdhsa_accum_offset 256
  .amdhsa_group_segment_fixed_size 0
  .amdhsa_kernarg_size 88
  .amdhsa_user_sgpr_count 2
  .amdhsa_user_sgpr_kernarg_segment_ptr 1
  .amdhsa_system_sgpr_workgroup_id_x 1
.end_amdhsa_kernel
"""
    open(OUT,'w').write(out)
    print('written',len(out))
main()
```
